```python
import torch

def _softmax(x, axis=-1):
    return torch.softmax(x, dim=axis)
def _gelu(x):
    return torch.nn.functional.gelu(x, approximate="tanh")
def _silu(x):
    return torch.nn.functional.silu(x)
def _sigmoid(x):
    return torch.sigmoid(x)
def _layernorm(x, axis=-1, eps=1e-5):
    m = x.mean(dim=axis, keepdim=True)
    v = x.var(dim=axis, keepdim=True, unbiased=False)
    return (x - m) / torch.sqrt(v + eps)
def _scatter_add(tgt, idx, src, axis=0):
    return tgt.clone().index_add_(axis, idx, src)
def _segment_sum(src, seg, n):
    out = torch.zeros((n,) + src.shape[1:], dtype=src.dtype)
    return out.index_add_(0, seg, src)
def _pad(x, pw):
    flat = tuple(v for pair in reversed(pw) for v in pair)
    return torch.nn.functional.pad(x, flat)

kernel_name = 'recurrent_scan__linear_attn_block__geglu_ffn__prompt'

def setup_inputs():

    _w = (lambda a: (lambda t: t.to(torch.bfloat16) if t.is_floating_point() else t)(torch.as_tensor(a)))
    def _A_setup():
        B, S, D = 1, 2048, 1024
        return {
            "x": _w((lambda *s: torch.randn(*s, dtype=torch.bfloat16) * 0.05)(B, S, D)),
            "wqkv": _w((lambda *s: torch.randn(*s, dtype=torch.bfloat16) * 0.05)(D, 3 * D)),
            "wo": _w((lambda *s: torch.randn(*s, dtype=torch.bfloat16) * 0.05)(D, D)),
        }
    _A_in = _A_setup()

    def _B_setup():
        B, S, D, F = 1, 2048, 1024, 3584
        return {
            "x": _w((lambda *s: torch.randn(*s, dtype=torch.bfloat16) * 0.05)(B, S, D)),
            "w_gate": _w((lambda *s: torch.randn(*s, dtype=torch.bfloat16) * 0.05)(D, F)),
            "w_up": _w((lambda *s: torch.randn(*s, dtype=torch.bfloat16) * 0.05)(D, F)),
            "w_down": _w((lambda *s: torch.randn(*s, dtype=torch.bfloat16) * 0.05)(F, D)),
        }
    _B_in = _B_setup()

    return {
        "A_x": _A_in["x"],
        "A_wqkv": _A_in["wqkv"],
        "A_wo": _A_in["wo"],
        "B_x": _B_in["x"],
        "B_w_gate": _B_in["w_gate"],
        "B_w_up": _B_in["w_up"],
        "B_w_down": _B_in["w_down"],
    }

def reference(A_x, A_wqkv, A_wo, B_x, B_w_gate, B_w_up, B_w_down):
    def _A_ref(x, wqkv, wo):
        B, S, D = x.shape
        H = 32; Dh = D // H
        qkv = (lambda x, *d: x.permute(*d))((x @ wqkv).reshape(B, S, 3, H, Dh), 2, 0, 3, 1, 4)
        q, k, v = qkv[0], qkv[1], qkv[2]
        phi = lambda t: torch.where(t > 0, t + 1, torch.exp(t)) + 1e-6
        pq, pk = phi(q), phi(k)
        kv = torch.einsum("bhsd,bhse->bhde", pk, v)
        z = torch.einsum("bhsd->bhd", pk)
        num = torch.einsum("bhqd,bhde->bhqe", pq, kv)
        den = torch.einsum("bhqd,bhd->bhq", pq, z)[..., None] + 1e-6
        o = num / den
        return (lambda x, *d: x.permute(*d))(o, 0, 2, 1, 3).reshape(B, S, D) @ wo

    def _B_ref(x, w_gate, w_up, w_down):
        return (_gelu(x @ w_gate) * (x @ w_up)) @ w_down

    x = A_x
    xn = _layernorm(x, axis=-1)
    s = _A_ref(xn, A_wqkv, A_wo)
    g = _silu(_B_ref(xn, B_w_gate, B_w_up, B_w_down))
    return x + s * g
```

```python
KNAME = "recurrent_scan__linear_attn_block__geglu_ffn__prompt_kernel"
class Asm:
    def __init__(self):
        self.lines = []
        self.nlab = 0
    def __call__(self, s=""):
        for l in s.split("\n"):
            self.lines.append(l if l.rstrip().endswith(":") else "    " + l.strip())
    def label(self, name):
        self.lines.append(name + ":")
    def newlabel(self, base="L"):
        self.nlab += 1
        return f"{base}_{self.nlab}"
    def text(self):
        return "\n".join(self.lines) + "\n"

def header(launches):
    s = ""
    if len(launches) == 1 and launches[0][0] == KNAME:
        k, g, b, l = launches[0]
        s += f"; @launch grid=({g},1,1) block=({b},1,1) lds={l}\n"
    else:
        for k, g, b, l in launches:
            s += f"; @launch kernel={k} grid=({g},1,1) block=({b},1,1) lds={l}\n"
    s += '.amdgcn_target "amdgcn-amd-amdhsa--gfx950"\n.text\n'
    return s

def kernel_begin(name):
    return f".globl {name}\n.p2align 8\n.type {name},@function\n{name}:\n"

def descriptor(name, vgpr, accum, sgpr=102):
    return f""".amdhsa_kernel {name}
  .amdhsa_next_free_vgpr {vgpr}
  .amdhsa_next_free_sgpr {sgpr}
  .amdhsa_accum_offset {accum}
  .amdhsa_group_segment_fixed_size 0
  .amdhsa_kernarg_size 80
  .amdhsa_user_sgpr_count 2
  .amdhsa_user_sgpr_kernarg_segment_ptr 1
  .amdhsa_system_sgpr_workgroup_id_x 1
  .amdhsa_float_denorm_mode_32 3
.end_amdhsa_kernel
"""
RODATA = '.section .rodata,"a"\n.p2align 6\n'

def srd(a, d, blo, bhi, nbytes):
    a(f"s_mov_b32 s{d}, {blo}")
    a(f"s_and_b32 s{d+1}, {bhi}, 0xffff")
    a(f"s_mov_b32 s{d+2}, {nbytes}")
    a(f"s_mov_b32 s{d+3}, 0x20000")
```

```python
from asmlib import *
import math, struct
def f2u(x): return struct.unpack("<I", struct.pack("<f", x))[0]
XN_OFF = 0
A2_OFF = 4 << 20
A2_BYTES = 16 * 144 * 8192
KVP_OFF = 24 << 20
KVP_BYTES = 32 * 8 * 6144
FP_OFF = 28 << 20
FP_BYTES = 256 * 4 * 8192
FLG_OFF = 40 << 20
FLG_BYTES = 4096 + 256 * 4 * 64
TS_OFF = 200 << 20
LOG2E = 1.4426950408889634
GC0 = -2.0 * math.sqrt(2.0 / math.pi) * LOG2E
GC1 = GC0 * 0.044715

class VM:
    def __init__(self, init=()): self.q = list(init)
    def op(self, tag): self.q.append(tag)
    def need(self, *tags):
        last = max(i for i, t in enumerate(self.q) if t in tags)
        n = len(self.q) - 1 - last
        self.q = self.q[last + 1:]
        assert n < 64
        return n

def interleave(mf, fillers):
    out = []; byp = {}
    for p, ins in fillers: byp.setdefault(min(p, len(mf) - 1), []).extend(ins)
    for k, m in enumerate(mf):
        out.append(m); out.extend(byp.get(k, []))
    return out

def ws_srd(a, d, off, nbytes):
    a(f"s_add_u32 s{d}, s18, {off}\ns_addc_u32 s{d+1}, s19, 0\ns_and_b32 s{d+1}, s{d+1}, 0xffff\ns_mov_b32 s{d+2}, {nbytes}\ns_mov_b32 s{d+3}, 0x20000")

def stamp(a, o, idx):
    if o.get("ts"):
        if idx == 0:
            for k in range(1, 8): a(f"s_mov_b32 s{80+2*k}, 0")
        a(f"s_memrealtime s[{80+2*idx}:{81+2*idx}]")
def stamp_out(a, o, kidx, wave_s, lane_v, n):
    if not o.get("ts"): return
    a("s_waitcnt vmcnt(0)")
    stamp(a, o, n - 1)
    a("s_waitcnt lgkmcnt(0)")
    ws_srd(a, 68, TS_OFF + kidx * 65536, 65536)
    for k in range(8): a(f"v_mov_b32 v{16+k}, " + (f"s{80+2*k}" if k < n else "0"))
    a(f"s_lshl_b32 s3, s2, 2\ns_add_u32 s3, s3, {wave_s}\ns_lshl_b32 s3, s3, 5\nv_mov_b32 v1, s3")
    a(f"v_cmp_eq_u32 vcc, 0, {lane_v}\ns_and_saveexec_b64 s[72:73], vcc")
    a("buffer_store_dwordx4 v[16:19], v1, s[68:71], 0 offen\nbuffer_store_dwordx4 v[20:23], v1, s[68:71], 0 offen offset:16")

def gen_ln(o):
    a = Asm()
    a("s_cmp_ge_u32 s2, 256\ns_cbranch_scc1 L0_end")
    stamp(a, o, 0)
    a("s_load_dwordx2 s[4:5], s[0:1], 0\ns_load_dwordx2 s[18:19], s[0:1], 72")
    a("v_lshrrev_b32 v1, 5, v0\nv_and_b32 v2, 31, v0")
    a("s_lshl_b32 s3, s2, 3\nv_add_u32 v3, s3, v1")
    a("v_lshlrev_b32 v4, 11, v3\nv_lshl_add_u32 v4, v2, 4, v4")
    a("s_waitcnt lgkmcnt(0)")
    srd(a, 8, "s4", "s5", 4 << 20)
    for i in range(4): a(f"buffer_load_dwordx4 v[{16+4*i}:{19+4*i}], v4, s[8:11], 0 offen offset:{512*i}")
    ws_srd(a, 12, XN_OFF, 4 << 20)
    ws_srd(a, 20, FLG_OFF, FLG_BYTES)
    a("s_mul_i32 s3, s2, 272\nv_lshlrev_b32 v5, 2, v0\nv_add_u32 v5, s3, v5\nv_mov_b32 v6, 0")
    a("v_cmp_gt_u32 vcc, 68, v0\ns_and_saveexec_b64 s[24:25], vcc\ns_cbranch_execz L0_nz\nbuffer_store_dword v6, v5, s[20:23], 0 offen\nL0_nz:\ns_mov_b64 exec, s[24:25]")
    a("v_lshrrev_b32 v5, 8, v3\nv_lshlrev_b32 v5, 19, v5")
    a("v_lshrrev_b32 v6, 2, v2\nv_lshl_add_u32 v5, v6, 14, v5")
    a("v_bfe_u32 v6, v3, 4, 4\nv_lshl_add_u32 v5, v6, 10, v5")
    a("v_and_b32 v6, 3, v2\nv_lshl_add_u32 v5, v6, 8, v5")
    a("v_and_b32 v6, 15, v3\nv_lshl_add_u32 v5, v6, 4, v5")
    a("s_waitcnt vmcnt(0)")
    for k in range(16):
        a(f"v_lshlrev_b32 v{32+2*k}, 16, v{16+k}\nv_and_b32 v{33+2*k}, 0xffff0000, v{16+k}")
    def reduce32(r):
        for dpp in ["quad_perm:[1,0,3,2]", "quad_perm:[2,3,0,1]", "row_half_mirror", "row_mirror"]:
            a(f"s_nop 1\nv_add_f32_dpp v{r}, v{r}, v{r} {dpp} row_mask:0xf bank_mask:0xf")
        a(f"v_mov_b32 v9, v{r}\ns_nop 1\nv_permlane16_swap_b32 v9, v{r}\ns_nop 1\nv_add_f32 v{r}, v{r}, v9")
    a("v_pk_add_f32 v[6:7], v[32:33], v[34:35]")
    for k in range(2, 16): a(f"v_pk_add_f32 v[6:7], v[6:7], v[{32+2*k}:{33+2*k}]")
    a("v_add_f32 v6, v6, v7")
    reduce32(6)
    a(f"v_mul_f32 v6, {f2u(1/1024):#x}, v6")
    a("v_mov_b32 v10, 0\nv_mov_b32 v11, 0")
    for k in range(16):
        a(f"v_pk_add_f32 v[12:13], v[{32+2*k}:{33+2*k}], v[6:7] op_sel_hi:[1,0] neg_lo:[0,1] neg_hi:[0,1]")
        a("v_pk_fma_f32 v[10:11], v[12:13], v[12:13], v[10:11]")
    a("v_add_f32 v10, v10, v11")
    reduce32(10)
    a(f"v_mul_f32 v10, {f2u(1/1024):#x}, v10")
    def rnd(r): a(f"v_cvt_pk_bf16_f32 v{r}, v{r}, v{r}\nv_lshlrev_b32 v{r}, 16, v{r}")
    rnd(6); rnd(10)
    a(f"v_add_f32 v10, {f2u(1e-5):#x}, v10"); rnd(10)
    a("v_sqrt_f32 v10, v10\ns_nop 0"); rnd(10)
    a("v_rcp_f32 v10, v10\ns_nop 0")
    for k in range(16):
        a(f"v_pk_add_f32 v[12:13], v[{32+2*k}:{33+2*k}], v[6:7] op_sel_hi:[1,0] neg_lo:[0,1] neg_hi:[0,1]")
        a("v_cvt_pk_bf16_f32 v12, v12, v13\nv_and_b32 v13, 0xffff0000, v12\nv_lshlrev_b32 v12, 16, v12")
        a("v_pk_mul_f32 v[12:13], v[12:13], v[10:11] op_sel_hi:[1,0]")
        a(f"v_cvt_pk_bf16_f32 v{16+k}, v12, v13")
        if k % 4 == 3:
            i = k // 4
            a(f"s_mov_b32 s3, {i*8*16384}\nbuffer_store_dwordx4 v[{16+4*i}:{19+4*i}], v5, s[12:15], s3 offen")
    if o.get("ts"):
        a("v_lshrrev_b32 v1, 6, v0\nv_and_b32 v2, 63, v0\ns_nop 0\nv_readfirstlane_b32 s26, v1")
        stamp_out(a, o, 0, "s26", "v2", 2)
    a("L0_end:\ns_endpgm")
    return a.text()

A0, A1, B0, B1 = 16, 48, 80, 120
def accn(i, j):
    b = j * 8 + i
    return ("a", b * 4) if b < 64 else ("v", 192 + (b - 64) * 4)
def acc(i, j):
    k, r = accn(i, j); return f"{k}[{r}:{r+3}]"

def fetch(a, i, j, dst):
    k, r = accn(i, j)
    if k == "v": return r
    for e in range(4): a(f"v_accvgpr_read_b32 v{dst+e}, a{r+e}")
    return dst

def gelu_batch(a, pairs, T, out):
    gs, us, ts = [], [], []
    for n, (i, jg, ju) in enumerate(pairs):
        gs.append(fetch(a, i, jg, T + 12 * n)); us.append(fetch(a, i, ju, T + 12 * n + 4)); ts.append(T + 12 * n + 8)
    H = [(n, h) for n in range(len(pairs)) for h in (0, 2)]
    pr = lambda r: f"v[{r}:{r+1}]"
    for n, h in H: a(f"v_pk_mul_f32 {pr(ts[n]+h)}, {pr(gs[n]+h)}, {pr(gs[n]+h)}")
    for n, h in H: a(f"v_pk_fma_f32 {pr(ts[n]+h)}, {pr(ts[n]+h)}, v[160:161], v[162:163]")
    for n, h in H: a(f"v_pk_mul_f32 {pr(ts[n]+h)}, {pr(ts[n]+h)}, {pr(gs[n]+h)}")
    for n in range(len(pairs)):
        for e in range(4): a(f"v_exp_f32 v{ts[n]+e}, v{ts[n]+e}")
    for n, h in H: a(f"v_pk_mul_f32 {pr(T+12*n+h)}, {pr(gs[n]+h)}, {pr(us[n]+h)}")
    for n, h in H: a(f"v_pk_add_f32 {pr(ts[n]+h)}, {pr(ts[n]+h)}, 1.0 op_sel_hi:[1,0]")
    for n in range(len(pairs)):
        for e in range(4): a(f"v_rcp_f32 v{ts[n]+e}, v{ts[n]+e}")
    a("s_nop 0")
    for n, h in H: a(f"v_pk_mul_f32 {pr(ts[n]+h)}, {pr(ts[n]+h)}, {pr(T+12*n+h)}")
    for n, h in H: a(f"v_cvt_pk_bf16_f32 v{out+2*n+h//2}, v{ts[n]+h}, v{ts[n]+h+1}")

def phi_batch(a, blocks, T, out):
    xs = [fetch(a, i, j, T + 8 * n) for n, (i, j) in enumerate(blocks)]
    ts = [T + 8 * n + 4 for n in range(len(blocks))]
    H = [(n, h) for n in range(len(blocks)) for h in (0, 2)]
    pr = lambda r: f"v[{r}:{r+1}]"
    for n, h in H: a(f"v_pk_mul_f32 {pr(ts[n]+h)}, {pr(xs[n]+h)}, v[164:165]")
    for n in range(len(blocks)):
        for e in range(4): a(f"v_exp_f32_e64 v{ts[n]+e}, v{ts[n]+e} clamp")
    for n in range(len(blocks)):
        for e in range(4): a(f"v_max_f32 v{T+8*n+e}, v166, v{xs[n]+e}")
    for n, h in H: a(f"v_pk_add_f32 {pr(ts[n]+h)}, {pr(ts[n]+h)}, {pr(T+8*n+h)}")
    for n, h in H: a(f"v_cvt_pk_bf16_f32 v{out+2*n+h//2}, v{ts[n]+h}, v{ts[n]+h+1}")

def gen_g1(o):
    ds_start, ds_stride = o.get("ds_start", 1), o.get("ds_stride", 2.5)
    dma_start, dma_stride = o.get("dma_start", 4), o.get("dma_stride", 8)
    st_fl = o.get("g1_store_flags", "")
    a = Asm()
    a("s_cmp_ge_u32 s2, 256\ns_cbranch_scc1 L1_end")
    stamp(a, o, 0)
    a("s_load_dwordx2 s[6:7], s[0:1], 8")
    a("s_load_dwordx4 s[12:15], s[0:1], 32")
    a("s_load_dwordx2 s[18:19], s[0:1], 72")
    a("v_lshrrev_b32 v1, 6, v0\nv_and_b32 v2, 63, v0\ns_nop 0\nv_readfirstlane_b32 s20, v1")
    a("s_and_b32 s21, s2, 7\ns_lshr_b32 s22, s2, 3")
    a("s_and_b32 s59, s22, 3\ns_lshl_b32 s21, s21, 2\ns_add_u32 s23, s59, s21")
    a("s_lshr_b32 s24, s22, 2")
    a(f"s_lshl_b32 s58, s59, 1\ns_add_u32 s58, s58, s24")
    if not o.get("g1_rot", 1): a("s_mov_b32 s58, 0")
    a("s_lshr_b32 s25, s23, 1\ns_and_b32 s26, s23, 1\ns_and_b32 s27, s25, 1")
    a("s_lshr_b32 s74, s20, 1\ns_and_b32 s75, s20, 1")
    a("s_waitcnt lgkmcnt(0)")
    ws_srd(a, 28, XN_OFF, 4 << 20)
    srd(a, 32, "s6", "s7", 6144 * 1024)
    srd(a, 36, "s12", "s13", 7168 * 1024)
    srd(a, 40, "s14", "s15", 7168 * 1024)
    a("s_cmp_eq_u32 s74, 0\ns_cselect_b32 s44, s12, s14\ns_cselect_b32 s45, s13, s15\ns_and_b32 s45, s45, 0xffff")
    a(f"s_mov_b32 s46, {7168*1024}\ns_mov_b32 s47, 0x20000")
    a("s_lshl_b32 s56, s24, 19\ns_lshl_b32 s65, s20, 12\ns_add_u32 s56, s56, s65")
    a("v_lshlrev_b32 v3, 4, v2\nv_add_u32 v3, s56, v3")
    a("v_lshrrev_b32 v4, 3, v2\ns_lshl_b32 s56, s20, 3\nv_add_u32 v4, s56, v4")
    a("v_bfe_u32 v5, v2, 4, 1\ns_lshl_b32 s56, s75, 1\nv_or_b32 v5, s56, v5\nv_lshlrev_b32 v5, 1, v5\nv_and_b32 v6, 7, v2\nv_xor_b32 v5, v5, v6\nv_lshlrev_b32 v5, 4, v5")
    a("s_lshl_b32 s56, s25, 7\ns_cmp_eq_u32 s26, 0\ns_cselect_b32 s57, 2048, 0\ns_add_u32 s56, s56, s57")
    a("v_mul_u32_u24 v7, 6144, v4\nv_add_u32 v7, v7, v5\nv_add_u32 v7, s56, v7")
    a("s_mul_i32 s56, s25, 448\ns_cmp_eq_u32 s27, 1\ns_cselect_b32 s57, 192, 0\ns_cselect_b32 s66, 64, 256\ns_cselect_b32 s67, 0, 384")
    a("s_cmp_eq_u32 s26, 1\ns_cselect_b32 s57, s57, s66\ns_add_u32 s57, s57, s56\ns_add_u32 s67, s67, s56")
    a("v_mul_u32_u24 v8, 7168, v4\nv_add_u32 v8, v8, v5\nv_add_u32 v8, s57, v8")
    a("v_lshrrev_b32 v4, 2, v2\ns_lshl_b32 s56, s75, 4\nv_add_u32 v4, s56, v4")
    a("v_lshrrev_b32 v5, 5, v2\nv_lshlrev_b32 v5, 1, v5\nv_and_b32 v6, 3, v2\nv_xor_b32 v5, v5, v6\nv_lshlrev_b32 v5, 4, v5")
    a("v_mul_u32_u24 v9, 7168, v4\nv_add_u32 v9, v9, v5\nv_add_u32 v9, s67, v9")
    a("s_lshl_b32 s64, s20, 10\ns_add_u32 s64, s64, 0x10000")
    a("s_mov_b32 s61, 0")
    a("s_cmp_eq_u32 s26, 1\ns_cbranch_scc1 L1_typeQ")

    def lds_addrs():
        a("s_lshl_b32 s56, s74, 13\nv_lshlrev_b32 v10, 4, v2\nv_add_u32 v10, s56, v10")
        a("v_lshrrev_b32 v4, 4, v2\nv_bfe_u32 v5, v2, 2, 2\nv_lshl_add_u32 v6, v4, 3, v5")
        a("v_bfe_u32 v5, v2, 3, 2")
        a("s_lshl_b32 s56, s75, 1\nv_xor_b32 v5, s56, v5\nv_lshlrev_b32 v5, 5, v5\nv_lshl_add_u32 v11, v6, 7, v5")
        a("v_and_b32 v5, 3, v2\nv_lshl_add_u32 v11, v5, 3, v11\nv_add_u32 v11, 0x10000, v11")
        a("v_xor_b32 v12, 32, v11")
        a("v_and_b32 v4, 1, v4\nv_xor_b32 v4, s75, v4\nv_lshlrev_b32 v4, 5, v4\nv_lshl_add_u32 v13, v6, 6, v4\nv_lshl_add_u32 v13, v5, 3, v13\nv_add_u32 v13, 0x10000, v13")
        a("v_add_u32 v14, 40960, v11\nv_add_u32 v15, 40960, v12\nv_add_u32 v1, 40960, v13")
    def kcalc():
        return [f"s_add_u32 s62, s61, s58", f"s_and_b32 s62, s62, 7", f"s_andn2_b32 s63, s61, 7", f"s_or_b32 s62, s62, s63",
                f"s_mul_i32 s63, s62, {32*6144}", f"s_mul_i32 s76, s62, {32*7168}", f"s_lshl_b32 s62, s62, 14", "s_add_u32 s61, s61, 1"]
    def dmas(typ, st):
        out = [[f"s_add_u32 m0, s65, {st*16384}", "buffer_load_dwordx4 v3, s[28:31], s62 offen lds"]]
        for p in range(1, 4): out.append([f"buffer_load_dwordx4 v3, s[28:31], s62 offen offset:{p*1024} lds"])
        if typ == "Q": sl = [(32, 7, 63, 0), (36, 8, 76, 0), (40, 8, 76, 0), (36, 8, 76, 128), (40, 8, 76, 128)]
        else:          sl = [(32, 7, 63, 0), (36, 8, 76, 0), (40, 8, 76, 0), (32, 7, 63, 2048), (44, 9, 76, 0)]
        for p, (sr, vo, so, imm) in enumerate(sl):
            out.append([f"s_add_u32 m0, s64, {st*20480 + p*4096 - imm}",
                        f"buffer_load_dwordx4 v{vo}, s[{sr}:{sr+3}], s{so} offen offset:{imm} lds"])
        return out
    def reads(typ, st):
        A = A1 if st & 1 else A0; B = B1 if st & 1 else B0
        out = [f"ds_read_b128 v[{A+4*i}:{A+4*i+3}], v10 offset:{st*16384 + i*1024}" for i in range(8)]
        va = (11, 12, 13) if st < 2 else (14, 15, 1)
        for j in range(10):
            p, cbi = j >> 1, j & 1
            base = (st & 1) * 20480 + p * 4096
            if typ == "KV" and p == 4:
                out.append(f"ds_read_b64_tr_b16 v[{B+4*j}:{B+4*j+1}], v{va[2]} offset:{base + cbi*2048}")
                out.append(f"ds_read_b64_tr_b16 v[{B+4*j+2}:{B+4*j+3}], v{va[2]} offset:{base + cbi*2048 + 256}")
            else:
                out.append(f"ds_read_b64_tr_b16 v[{B+4*j}:{B+4*j+1}], v{va[cbi]} offset:{base}")
                out.append(f"ds_read_b64_tr_b16 v[{B+4*j+2}:{B+4*j+3}], v{va[cbi]} offset:{base + 512}")
        return out
    def mfmas(typ, st):
        A = A1 if st & 1 else A0; B = B1 if st & 1 else B0
        out = []
        for j in range(10):
            nt = (typ == "KV" and (j >> 1) in (0, 3))
            ii = list(range(8))
            if j & 1: ii.reverse()
            for i in ii:
                x = f"v[{A+4*i}:{A+4*i+3}]"; w = f"v[{B+4*j}:{B+4*j+3}]"
                op = (x, w) if nt else (w, x)
                out.append(f"v_mfma_f32_16x16x32_bf16 {acc(i,j)}, {op[0]}, {op[1]}, {acc(i,j)}")
        return out
    def step(typ, st, dma, rd, vm, bar):
        fill = []
        if rd:
            for k, r in enumerate(reads(typ, (st + 1) & 3)): fill.append((int(ds_start + k * ds_stride), [r]))
        if dma:
            kc = kcalc()
            for k in range(4): fill.append((k, kc[2*k:2*k+2]))
            for k, g in enumerate(dmas(typ, st)):
                pos = int(dma_start + k * dma_stride)
                if len(g) == 2: fill.append((pos, [g[0]])); fill.append((pos + 1, [g[1]]))
                else: fill.append((pos + 1, g))
        for l in interleave(mfmas(typ, st), fill): a(l)
        if rd: a("s_waitcnt " + (f"vmcnt({vm}) " if vm is not None else "") + "lgkmcnt(0)")
        if bar: a("s_barrier")

    for typ in ["KV", "Q"]:
        a(f"L1_type{typ}:")
        for st in range(4):
            for l in kcalc(): a(l)
            for g in dmas(typ, st):
                a(g[0])
                if len(g) == 2: a("s_nop 0"); a(g[1])
        lds_addrs()
        for r in range(256): a(f"v_accvgpr_write_b32 a{r}, 0")
        for r in range(192, 256): a(f"v_mov_b32 v{r}, 0")
        a(f"v_mov_b32 v160, {f2u(GC1):#x}\nv_mov_b32 v161, v160\nv_mov_b32 v162, {f2u(GC0):#x}\nv_mov_b32 v163, v162")
        a(f"v_mov_b32 v164, {f2u(LOG2E):#x}\nv_mov_b32 v165, v164\nv_mov_b32 v166, {f2u(1e-6):#x}")
        ws_srd(a, 48, A2_OFF, A2_BYTES)
        ws_srd(a, 52, KVP_OFF, KVP_BYTES)
        ws_srd(a, 8, FLG_OFF, FLG_BYTES)
        a("s_waitcnt vmcnt(27)\ns_barrier")
        for r in reads(typ, 0): a(r)
        a("s_waitcnt vmcnt(18) lgkmcnt(0)\ns_barrier")
        stamp(a, o, 1)
        a("s_mov_b32 s77, 0")
        a(".p2align 6")
        a(f"L1_loop{typ}:")
        for st in range(4): step(typ, st, True, True, 18, True)
        a(f"s_add_u32 s77, s77, 1\ns_cmp_lt_u32 s77, 7\ns_cbranch_scc1 L1_loop{typ}")
        step(typ, 0, False, True, 9, True)
        step(typ, 1, False, True, 0, True)
        step(typ, 2, False, True, None, False)
        step(typ, 3, False, False, None, False)
        stamp(a, o, 2)
        a("v_lshlrev_b32 v4, 4, v2")
        a(f"s_lshl_b32 s60, s24, 1\ns_add_u32 s60, s60, s74\ns_mul_i32 s60, s60, {144*8192}")
        a("s_lshl_b32 s78, s25, 1\ns_add_u32 s78, s78, s75")
        a("s_lshr_b32 s62, s57, 6\ns_add_u32 s62, s62, s75\ns_add_u32 s62, s62, 32\ns_lshl_b32 s62, s62, 13\ns_add_u32 s62, s62, s60\ns_add_u32 s63, s62, 4096")
        vm = VM()
        def wide(jg, ju, s_lo, s_hi, T, O):
            for i in range(8):
                ob = O + 4 * (i & 1)
                gelu_batch(a, [(i, jg, ju), (i, jg + 1, ju + 1)], T, ob)
                a(f"buffer_store_dwordx4 v[{ob}:{ob+3}], v4, s[48:51], s{s_lo if i < 4 else s_hi} offen offset:{(i&3)*1024} {st_fl}"); vm.op("h")
        if typ == "KV":
            for r in range(40, 44): a(f"v_mov_b32 v{r}, 0x3f803f80")
            for ip in range(4):
                P = 48 + 16 * (ip & 1)
                for db in range(2):
                    phi_batch(a, [(2*ip, db), (2*ip+1, db)], 96, P + 4 * db)
                for eb in range(2):
                    for n in range(2):
                        r = fetch(a, 2*ip+n, 6 + eb, 96 + 4 * n)
                        a(f"v_cvt_pk_bf16_f32 v{P+8+4*eb+2*n}, v{r}, v{r+1}\nv_cvt_pk_bf16_f32 v{P+8+4*eb+2*n+1}, v{r+2}, v{r+3}")
                a("s_nop 1")
                for db in range(2):
                    for eb in range(2):
                        d = 16 + 8*db + 4*eb
                        a(f"v_mfma_f32_16x16x32_bf16 v[{d}:{d+3}], v[{P+4*db}:{P+4*db+3}], v[{P+8+4*eb}:{P+8+4*eb+3}], " + (f"v[{d}:{d+3}]" if ip else "0"))
                    d = 32 + 4*db
                    a(f"v_mfma_f32_16x16x32_bf16 v[{d}:{d+3}], v[{P+4*db}:{P+4*db+3}], v[40:43], " + (f"v[{d}:{d+3}]" if ip else "0"))
            a(f"s_mul_i32 s56, s75, 6144\nv_add_u32 v5, s56, v4")
            gelu_batch(a, [(0, 8, 9), (1, 8, 9)], 96, 80)
            a("s_cmp_eq_u32 s74, 0\ns_cbranch_scc1 L1_kv_w0")
            for b in range(6): a(f"ds_write_b128 v5, v[{16+4*b}:{19+4*b}] offset:{b*1024}")
            a("s_waitcnt lgkmcnt(0)\ns_barrier")
            for i in (2, 4, 6): gelu_batch(a, [(i, 8, 9), (i+1, 8, 9)], 96, 80 + 2*i)
            a("s_branch L1_kv_join")
            a("L1_kv_w0:")
            a("s_barrier")
            for b in range(6): a(f"ds_read_b128 v[{48+4*b}:{51+4*b}], v5 offset:{b*1024}")
            a(f"s_lshl_b32 s56, s78, 3\ns_add_u32 s56, s56, s24\ns_mul_i32 s56, s56, 6144\ns_add_u32 s79, s56, 4096")
            a("s_waitcnt lgkmcnt(0)")
            for r in range(0, 24, 2): a(f"v_pk_add_f32 v[{16+r}:{17+r}], v[{16+r}:{17+r}], v[{48+r}:{49+r}]")
            for b in range(6): a(f"buffer_store_dwordx4 v[{16+4*b}:{19+4*b}], v4, s[52:55], s{56 if b < 4 else 79} offen offset:{(b&3)*1024} sc1")
            for i in (2, 4, 6): gelu_batch(a, [(i, 8, 9), (i+1, 8, 9)], 96, 80 + 2*i)
            a("s_lshl_b32 s56, s78, 7\ns_lshl_b32 s79, s24, 2\ns_add_u32 s56, s56, s79\nv_mov_b32 v5, 0\nv_mov_b32 v6, 1")
            a("s_waitcnt vmcnt(0)")
            a("s_mov_b64 exec, 1\nbuffer_store_dword v6, v5, s[8:11], s56 offen sc1\ns_mov_b64 exec, -1")
            a("L1_kv_join:")
            a("s_lshr_b32 s56, s67, 6\ns_add_u32 s56, s56, 32\ns_lshl_b32 s56, s56, 13\ns_add_u32 s56, s56, s60\ns_lshl_b32 s79, s75, 3\ns_add_u32 s56, s56, s79\ns_add_u32 s79, s56, 4096")
            for i in range(8):
                a(f"buffer_store_dwordx2 v[{80+2*i}:{81+2*i}], v4, s[48:51], s{56 if i < 4 else 79} offen offset:{(i&3)*1024} {st_fl}")
            wide(2, 4, 62, 63, 96, 16)
        else:
            wide(2, 4, 62, 63, 168, 16)
            for i in range(8): phi_batch(a, [(i, 0), (i, 1)], 168, 128 + 4 * i)
            a("s_lshl_b32 s56, s78, 7\nv_and_b32 v5, 7, v2\nv_lshlrev_b32 v5, 2, v5")
            a("s_mov_b32 s79, 0\nL1_poll:")
            a("buffer_load_dword v6, v5, s[8:11], s56 offen sc1\ns_waitcnt vmcnt(0)")
            a("v_cmp_ne_u32 vcc, 1, v6\ns_add_u32 s79, s79, 1\ns_cbranch_vccz L1_polled\ns_sleep 2\ns_cmp_lt_u32 s79, 0x40000\ns_cbranch_scc1 L1_poll")
            a("L1_polled:")
            stamp(a, o, 3)
            vm = VM()
            a(f"s_lshl_b32 s56, s78, 3\ns_lshl_b32 s79, s74, 2\ns_add_u32 s56, s56, s79\ns_mul_i32 s56, s56, 6144")
            for k in range(24):
                if k and k % 4 == 0: a("s_add_u32 s56, s56, 4096")
                a(f"buffer_load_dwordx4 v[{32+4*k}:{35+4*k}], v4, s[52:55], s56 offen offset:{(k&3)*1024} sc1"); vm.op("p")
            a("s_add_u32 s62, s62, 16384\ns_add_u32 s63, s63, 16384")
            wide(6, 8, 62, 63, 168, 16)
            a(f"s_waitcnt vmcnt({vm.need('p')})")
            for r in range(0, 24, 2): a(f"v_pk_add_f32 v[{32+r}:{33+r}], v[{32+r}:{33+r}], v[{56+r}:{57+r}]")
            for r in range(0, 24, 2): a(f"v_pk_add_f32 v[{80+r}:{81+r}], v[{80+r}:{81+r}], v[{104+r}:{105+r}]")
            for r in range(0, 24, 2): a(f"v_pk_add_f32 v[{32+r}:{33+r}], v[{32+r}:{33+r}], v[{80+r}:{81+r}]")
            a("s_mul_i32 s56, s20, 6144\nv_add_u32 v5, s56, v4\ns_xor_b32 s56, s20, 2\ns_mul_i32 s56, s56, 6144\nv_add_u32 v6, s56, v4")
            for b in range(6): a(f"ds_write_b128 v5, v[{32+4*b}:{35+4*b}] offset:{b*1024}")
            a("s_waitcnt lgkmcnt(0)\ns_barrier")
            for b in range(6): a(f"ds_read_b128 v[{56+4*b}:{59+4*b}], v6 offset:{b*1024}")
            a("s_lshl_b32 s62, s78, 13\ns_add_u32 s62, s62, s60\ns_add_u32 s63, s62, 4096")
            a("s_waitcnt lgkmcnt(0)")
            for r in range(0, 24, 2): a(f"v_pk_add_f32 v[{32+r}:{33+r}], v[{32+r}:{33+r}], v[{56+r}:{57+r}]")
            for eb in range(2):
                for db in range(2):
                    r = 32 + 8*db + 4*eb
                    a(f"v_cvt_pk_bf16_f32 v{56+4*eb+2*db}, v{r}, v{r+1}\nv_cvt_pk_bf16_f32 v{56+4*eb+2*db+1}, v{r+2}, v{r+3}")
            for db in range(2):
                r = 48 + 4*db
                a(f"v_cvt_pk_bf16_f32 v{64+2*db}, v{r}, v{r+1}\nv_cvt_pk_bf16_f32 v{64+2*db+1}, v{r+2}, v{r+3}")
            a("s_nop 1")
            def D(i): return 68 + 12 * i if i < 4 else 192 + 12 * (i - 4)
            for i in range(8):
                d = D(i); q = 128 + 4 * i
                a(f"v_mfma_f32_16x16x32_bf16 v[{d+8}:{d+11}], v[64:67], v[{q}:{q+3}], 0")
                a(f"v_mfma_f32_16x16x32_bf16 v[{d}:{d+3}], v[56:59], v[{q}:{q+3}], 0")
                a(f"v_mfma_f32_16x16x32_bf16 v[{d+4}:{d+7}], v[60:63], v[{q}:{q+3}], 0")
            a("s_nop 7")
            for i in range(8): a(f"v_add_f32 v{D(i)+8}, v166, v{D(i)+8}")
            for i in range(8): a(f"v_rcp_f32 v{D(i)+8}, v{D(i)+8}")
            for i in range(8):
                d = D(i)
                for h in range(0, 8, 2): a(f"v_pk_mul_f32 v[{d+h}:{d+h+1}], v[{d+h}:{d+h+1}], v[{d+8}:{d+9}] op_sel_hi:[1,0]")
                for h in range(4): a(f"v_cvt_pk_bf16_f32 v{d+8+h}, v{d+2*h}, v{d+2*h+1}")
                a(f"buffer_store_dwordx4 v[{d+8}:{d+11}], v4, s[48:51], s{62 if i < 4 else 63} offen offset:{(i&3)*1024} {st_fl}")
        stamp(a, o, 4)
        a("s_branch L1_fin")
    a("L1_fin:")
    stamp_out(a, o, 1, "s20", "v2", 6)
    a("L1_end:\ns_endpgm")
    return a.text()

def gen_g2(o):
    a = Asm()
    FA = [16, 48]; FB = [80, 112]
    def accF(i, cb): r = 144 + 16 * i + 4 * cb; return f"v[{r}:{r+3}]"
    def accS(i, cb): r = 208 + 16 * i + 4 * cb; return f"v[{r}:{r+3}]"
    a("s_cmp_ge_u32 s2, 256\ns_cbranch_scc1 L2_end")
    stamp(a, o, 0)
    a("s_load_dwordx2 s[4:5], s[0:1], 0\ns_load_dwordx2 s[6:7], s[0:1], 16\ns_load_dwordx4 s[12:15], s[0:1], 48\ns_load_dwordx2 s[18:19], s[0:1], 72")
    a("v_lshrrev_b32 v1, 6, v0\nv_and_b32 v2, 63, v0\ns_nop 0\nv_readfirstlane_b32 s20, v1")
    a("s_and_b32 s21, s2, 7\ns_lshr_b32 s22, s2, 3")
    if o.get("g2_map", "b") == "b":
        a("s_and_b32 s25, s21, 1")
        a("s_bfe_u32 s24, s21, 0x10001\ns_lshl_b32 s24, s24, 2\ns_and_b32 s56, s22, 3\ns_add_u32 s24, s24, s56")
        a("s_lshr_b32 s23, s21, 2\ns_lshl_b32 s23, s23, 3\ns_lshr_b32 s57, s22, 2\ns_add_u32 s23, s23, s57")
    else:
        a("s_bfe_u32 s25, s22, 0x10002")
        a("s_and_b32 s24, s21, 1\ns_lshl_b32 s24, s24, 2\ns_lshr_b32 s56, s22, 3\ns_add_u32 s24, s24, s56")
        a("s_lshr_b32 s23, s21, 1\ns_lshl_b32 s23, s23, 2\ns_and_b32 s57, s22, 3\ns_add_u32 s23, s23, s57")
    a("s_add_u32 s58, s56, s57")
    if not o.get("g2_rot", 1): a("s_mov_b32 s58, 0")
    a("s_lshr_b32 s74, s20, 1\ns_and_b32 s75, s20, 1")
    a("s_waitcnt lgkmcnt(0)")
    ws_srd(a, 28, A2_OFF, A2_BYTES)
    srd(a, 32, "s12", "s13", 3584 * 2048)
    srd(a, 36, "s6", "s7", 1024 * 2048)
    a(f"s_mul_i32 s56, s23, {144*8192}\ns_lshl_b32 s65, s20, 12\ns_add_u32 s56, s56, s65\nv_lshlrev_b32 v4, 4, v2")
    a(f"s_mul_i32 s57, s25, {56*8192}\ns_add_u32 s57, s57, {32*8192}\ns_add_u32 s57, s57, s56\nv_add_u32 v3, s57, v4")
    a(f"s_lshl_b32 s59, s25, 11\ns_add_u32 s57, s56, s59\nv_add_u32 v5, s57, v4\ns_add_u32 s66, s65, s59")
    a("v_lshrrev_b32 v8, 3, v2\ns_lshl_b32 s56, s20, 4\nv_add_u32 v8, s56, v8\nv_lshlrev_b32 v8, 11, v8")
    a("v_lshrrev_b32 v9, 4, v2\nv_lshlrev_b32 v9, 1, v9\nv_and_b32 v10, 7, v2\nv_xor_b32 v9, v9, v10\nv_lshl_add_u32 v8, v9, 4, v8")
    a(f"s_lshl_b32 s56, s24, 8\nv_add_u32 v6, s56, v8\ns_mul_i32 s56, s25, {1792*2048}\nv_add_u32 v7, s56, v6")
    a("s_lshl_b32 s64, s20, 11\ns_add_u32 s64, s64, 0x10000")
    a("s_mov_b32 s61, 0")
    def kcalc():
        return ["s_add_u32 s62, s61, s58", "s_and_b32 s62, s62, 3", "s_andn2_b32 s63, s61, 3", "s_or_b32 s62, s62, s63",
                "s_lshl_b32 s63, s62, 17", "s_lshl_b32 s62, s62, 14", "s_add_u32 s76, s63, 16384", "s_add_u32 s61, s61, 1"]
    def dmas(ph, st):
        va, vb, sb, ma, na = (3, 7, 32, 65, 4) if ph == "F" else (5, 6, 36, 66, 2)
        out = [[f"s_add_u32 m0, s{ma}, {st*16384}", f"buffer_load_dwordx4 v{va}, s[28:31], s62 offen lds"]]
        for p in range(1, na): out.append([f"buffer_load_dwordx4 v{va}, s[28:31], s62 offen offset:{p*1024} lds"])
        for rh in range(2):
            for pn in range(2):
                out.append([f"s_add_u32 m0, s64, {st*16384 + pn*8192 + rh*1024 - pn*128}",
                            f"buffer_load_dwordx4 v{vb}, s[{sb}:{sb+3}], s{76 if rh else 63} offen offset:{pn*128} lds"])
        return out
    def reads(ph, st):
        A = FA[st & 1]; B = FB[st & 1]; out = []
        for kk in range(2):
            for i in range(4 if ph == "F" else 2):
                out.append(f"ds_read_b128 v[{A+16*kk+4*i}:{A+16*kk+4*i+3}], v{8 if i < 2 else 9} offset:{st*16384 + kk*8192 + (i&1)*1024}")
            for cb in range(4):
                for n in range(2):
                    r = B + 16*kk + 4*cb + 2*n
                    out.append(f"ds_read_b64_tr_b16 v[{r}:{r+1}], v{10+cb} offset:{st*16384 + kk*4096 + n*2048}")
        return out
    def mfmas(ph, st, first=False):
        A = FA[st & 1]; B = FB[st & 1]; out = []
        for kk in range(2):
            ii = [2, 3, 0, 1] if ph == "F" else [0, 1]
            for i in ii:
                cbs = list(range(4))
                if i & 1: cbs.reverse()
                for cb in cbs:
                    c = accF(i, cb) if ph == "F" else accS(i, cb)
                    out.append(f"v_mfma_f32_16x16x32_bf16 {c}, v[{B+16*kk+4*cb}:{B+16*kk+4*cb+3}], v[{A+16*kk+4*i}:{A+16*kk+4*i+3}], {c}")
        return out
    vm = VM()
    def step(ph, st, dph, rph, waitfor, bar=True, extra=(), tag=None):
        mf = mfmas(ph, st); n = len(mf); fill = []
        if rph:
            rs = reads(rph, (st + 1) & 3)
            for k, r in enumerate(rs): fill.append((int(k * (n - 4) / len(rs)), [r]))
        if dph:
            kc = kcalc()
            fill.append((0, kc[:4])); fill.append((1, kc[4:]))
            ds = dmas(dph, st)
            for k, g in enumerate(ds):
                pos = 2 + int(k * (n - 4) / len(ds))
                if len(g) == 2: fill.append((pos, [g[0]])); fill.append((pos + 1, [g[1]]))
                else: fill.append((pos + 1, g))
                vm.op(tag)
        for l in interleave(mf, fill): a(l)
        for l in extra: a(l)
        w = f"vmcnt({vm.need(waitfor)}) " if waitfor is not None else ""
        if rph: a(f"s_waitcnt {w}lgkmcnt(0)")
        if bar: a("s_barrier")
    for st in range(4):
        for l in kcalc(): a(l)
        for g in dmas("F", st):
            a(g[0])
            if len(g) == 2: a("s_nop 0"); a(g[1])
            vm.op(("F", st))
    a("s_lshl_b32 s56, s74, 12\ns_add_u32 s57, s56, s59\nv_add_u32 v8, s57, v4\nv_xor_b32 v9, 2048, v8")
    a("v_lshrrev_b32 v14, 2, v2\nv_lshlrev_b32 v14, 7, v14\nv_and_b32 v15, 3, v2\nv_lshl_add_u32 v14, v15, 3, v14")
    a("v_bfe_u32 v15, v2, 3, 2\nv_lshl_add_u32 v14, v15, 5, v14\ns_lshl_b32 s56, s75, 13\ns_add_u32 s56, s56, 0x10000\nv_add_u32 v10, s56, v14")
    a("v_xor_b32 v11, 32, v10\nv_xor_b32 v12, 64, v10\nv_xor_b32 v13, 96, v10")
    for r in range(144, 240): a(f"v_mov_b32 v{r}, 0")
    ws_srd(a, 40, FP_OFF, FP_BYTES)
    ws_srd(a, 8, FLG_OFF, FLG_BYTES)
    srd(a, 44, "s4", "s5", 4 << 20)
    srd(a, 48, "s14", "s15", 4 << 20)
    a("s_lshl_b32 s52, s23, 3\ns_add_u32 s52, s52, s24\ns_lshl_b32 s52, s52, 1\ns_add_u32 s52, s52, s25\ns_lshl_b32 s52, s52, 2\ns_add_u32 s52, s52, s20\ns_xor_b32 s53, s52, 4")
    a("s_lshl_b32 s56, s23, 7\ns_lshl_b32 s57, s74, 6\ns_add_u32 s56, s56, s57\ns_lshl_b32 s57, s25, 5\ns_add_u32 s56, s56, s57")
    a("v_and_b32 v14, 15, v2\nv_add_u32 v14, s56, v14\nv_lshlrev_b32 v14, 11, v14\nv_lshrrev_b32 v15, 4, v2\nv_lshl_add_u32 v14, v15, 3, v14")
    a("s_lshl_b32 s56, s24, 8\ns_lshl_b32 s57, s75, 7\ns_add_u32 s56, s56, s57\nv_add_u32 v14, s56, v14")
    a(f"s_waitcnt vmcnt({vm.need(('F',0))})\ns_barrier")
    for r in reads("F", 0): a(r)
    a(f"s_waitcnt vmcnt({vm.need(('F',1))}) lgkmcnt(0)\ns_barrier")
    stamp(a, o, 1)
    a("s_mov_b32 s77, 0\n.p2align 6\nL2_loopF:")
    for st in range(4): step("F", st, "F", "F", ("F", 2 + st), tag=("F", 4 + st))
    a("s_add_u32 s77, s77, 1\ns_cmp_lt_u32 s77, 6\ns_cbranch_scc1 L2_loopF")
    a("s_mov_b32 s61, 0")
    step("F", 0, "S", "F", ("F", 6), tag=("S", 0))
    step("F", 1, "S", "F", ("F", 7), tag=("S", 1))
    step("F", 2, "S", "F", ("S", 0), tag=("S", 2))
    ex = ["s_lshl_b32 s56, s52, 13", "s_add_u32 s57, s56, 4096"]
    for i in (2, 3):
        for cb in range(4):
            ex.append(f"buffer_store_dwordx4 {accF(i,cb)}, v4, s[40:43], s{56 if i == 2 else 57} offen offset:{cb*1024} sc1")
    mf_q = list(vm.q)
    step("F", 3, "S", "S", None, bar=False, tag=("S", 3))
    for l in ex: a(l)
    for _ in range(8): vm.op("fp")
    a(f"s_waitcnt vmcnt({vm.need(('S',1))})\ns_barrier")
    stamp(a, o, 2)
    for t in range(16):
        st = t & 3
        dph = "S" if t < 12 else None
        rph = "S" if t < 15 else None
        wf = ("S", t + 2) if t + 2 < 16 else None
        step("S", st, dph, rph, wf, bar=(t < 14), tag=("S", t + 4))
        if t == 2:
            assert "fp" not in vm.q
            a("s_lshl_b32 s56, s52, 6\ns_add_u32 s56, s56, 4096\nv_mov_b32 v15, 0\nv_mov_b32 v1, 1")
            a("s_mov_b64 exec, 1\nbuffer_store_dword v1, v15, s[8:11], s56 offen sc1\ns_mov_b64 exec, -1"); vm.op("flag")
        if t == 13:
            a("s_lshl_b32 s56, s53, 6\ns_add_u32 s56, s56, 4096")
            a("s_mov_b32 s79, 0\nL2_poll:")
            a("buffer_load_dword v1, v15, s[8:11], s56 offen sc1\ns_waitcnt vmcnt(0)")
            a("v_cmp_ne_u32 vcc, 1, v1\ns_add_u32 s79, s79, 1\ns_cbranch_vccz L2_polled\ns_sleep 2\ns_cmp_lt_u32 s79, 0x40000\ns_cbranch_scc1 L2_poll")
            a("L2_polled:")
            vm.q = []
            a("s_lshl_b32 s56, s53, 13\ns_add_u32 s57, s56, 4096\ns_mov_b32 s59, 32768")
            for i in range(2):
                for cb in range(4):
                    a(f"buffer_load_dwordx4 {accF(i+2,cb)}, v4, s[40:43], s{56 if i == 0 else 57} offen offset:{cb*1024} sc1")
            for i in range(2):
                for cb in range(4):
                    r = 240 + 8*i + 2*cb
                    a(f"buffer_load_dwordx2 v[{r}:{r+1}], v14, s[44:47], {'s59' if i else '0'} offen offset:{cb*32}")
    stamp(a, o, 3)
    a(f"v_mov_b32 v16, {f2u(-LOG2E):#x}\nv_mov_b32 v17, v16")
    a("s_waitcnt vmcnt(0)")
    pr = lambda r: f"v[{r}:{r+1}]"
    for i in range(2):
        F = 144 + 16*i; P = 176 + 16*i; S = 208 + 16*i; T = 32; X = 48
        for h in range(0, 16, 2): a(f"v_pk_add_f32 {pr(F+h)}, {pr(F+h)}, {pr(P+h)}")
        for h in range(0, 16, 2): a(f"v_pk_mul_f32 {pr(T+h)}, {pr(F+h)}, v[16:17]")
        for e in range(16): a(f"v_exp_f32 v{T+e}, v{T+e}")
        for h in range(0, 16, 2): a(f"v_pk_mul_f32 {pr(F+h)}, {pr(F+h)}, {pr(S+h)}")
        for h in range(0, 16, 2): a(f"v_pk_add_f32 {pr(T+h)}, {pr(T+h)}, 1.0 op_sel_hi:[1,0]")
        for e in range(16): a(f"v_rcp_f32 v{T+e}, v{T+e}")
        for k in range(8): a(f"v_lshlrev_b32 v{X+2*k}, 16, v{240+8*i+k}\nv_and_b32 v{X+2*k+1}, 0xffff0000, v{240+8*i+k}")
        for h in range(0, 16, 2): a(f"v_pk_fma_f32 {pr(T+h)}, {pr(T+h)}, {pr(F+h)}, {pr(X+h)}")
        for k in range(8): a(f"v_cvt_pk_bf16_f32 v{64+8*i+k}, v{T+2*k}, v{T+2*k+1}")
        for cb in range(4):
            r = 64 + 8*i + 2*cb
            a(f"buffer_store_dwordx2 v[{r}:{r+1}], v14, s[48:51], {'s59' if i else '0'} offen offset:{cb*32}")
    stamp(a, o, 4)
    stamp_out(a, o, 2, "s20", "v2", 6)
    a("L2_end:\ns_endpgm")
    return a.text()

def gen(**o):
    ks = [("ln_kernel", gen_ln(o), 256, 0, 64, 64), ("g1_kernel", gen_g1(o), 256, 147456, 512, 256), ("g2_kernel", gen_g2(o), 256, 131072, 256, 256)]
    s = header([(k, 256, b, l) for k, _, b, l, _, _ in ks])
    for k, t, *_ in ks: s += kernel_begin(k) + t
    s += RODATA
    for k, _, _, _, v, ac in ks: s += ".p2align 6\n" + descriptor(k, v, ac)
    return s

if __name__ == "__main__":
    import sys
    ref = open("recurrent_scan__linear_attn_block__geglu_ffn__prompt.s.ref").read().split("\n")
    hdr = "\n".join(l for l in ref[:11]) + "\n"
    open(sys.argv[1], "w").write(hdr + gen())
```

```python
from asmlib import *
import math, struct
import v1
from v1 import f2u, LOG2E, GC0, GC1
XN_OFF = 0
A2_OFF = 4 << 20
KVP_OFF = 24 << 20
FP_OFF = 28 << 20
FLG_OFF = 40 << 20
KVF, HF, FPF = FLG_OFF, FLG_OFF + 4096, FLG_OFF + 8192
WS_BYTES = 48 << 20
TS_OFF = 200 << 20
NK = 2
SPIN = 0x40000

class VMQ:
    def __init__(self): self.q = []
    def op(self, tag, n=1): self.q += [tag] * n
    def required(self, tag):
        idx = [i for i, t in enumerate(self.q) if t == tag]
        return None if not idx else len(self.q) - 1 - idx[-1]
    def wait(self, n):
        if len(self.q) > n: self.q = self.q[len(self.q) - n:]
    def need(self, tag):
        n = self.required(tag)
        assert n is not None and n < 64, (tag, n)
        self.wait(n); return n

def sched(mf, items, tail=(), strict=True):
    order = {"s": 0, "d": 1, "V": 2, "v": 3}
    gaps = [[] for _ in mf]
    for p, k, t in items: gaps[p].append((k, t))
    out = []
    for g, m in enumerate(mf):
        out.append(m)
        its = sorted(gaps[g], key=lambda x: order[x[0]])
        ns = sum(k == "s" for k, _ in its); nv = len(its) - ns
        if strict: assert nv + max(ns - 1, 0) <= 2 and sum(k == "d" for k, _ in its) <= 1 and sum(k == "V" for k, _ in its) <= 1, (g, its)
        out += [t for _, t in its]
    return out + list(tail)

def gen_mega(o):
    a = Asm()
    TS = o.get("ts", 0)
    LAG1, LAG2 = o.get("lag1", 2), o.get("lag2", 2)
    def stamp(idx):
        if TS:
            if idx == 0:
                for k in range(1, 8): a(f"s_mov_b32 s{84+2*k}, 0")
            a(f"s_memrealtime s[{84+2*idx}:{85+2*idx}]")
    pr = lambda r: f"v[{r}:{r+1}]"
    q4 = lambda k, r: f"{k}[{r}:{r+3}]"
    a("s_cmp_ge_u32 s2, 256\ns_cbranch_scc1 L_end")
    stamp(0)
    a("s_load_dwordx4 s[4:7], s[0:1], 0\ns_load_dwordx4 s[12:15], s[0:1], 32\ns_load_dwordx2 s[10:11], s[0:1], 72")
    a("s_load_dwordx2 s[8:9], s[0:1], 16\ns_load_dwordx4 s[16:19], s[0:1], 48")
    a("v_lshrrev_b32 v1, 6, v0\nv_and_b32 v2, 63, v0\nv_lshlrev_b32 v4, 4, v2\nv_readfirstlane_b32 s20, v1")
    a("s_and_b32 s3, s2, 7\ns_lshr_b32 s82, s2, 3")
    a("s_and_b32 s83, s82, 3\ns_lshl_b32 s23, s3, 2\ns_add_u32 s23, s23, s83\ns_lshr_b32 s24, s82, 2")
    a("s_and_b32 s75, s3, 1")
    a("s_bfe_u32 s74, s3, 0x10001\ns_lshl_b32 s74, s74, 2\ns_add_u32 s74, s74, s83")
    a("s_lshr_b32 s73, s3, 2\ns_lshl_b32 s73, s73, 3\ns_add_u32 s73, s73, s24")
    a("s_add_u32 s72, s83, s24")
    a("s_lshr_b32 s25, s23, 1\ns_and_b32 s26, s23, 1\ns_and_b32 s3, s25, 1")
    a("s_lshr_b32 s21, s20, 1\ns_and_b32 s22, s20, 1\ns_lshl_b32 s27, s25, 1\ns_add_u32 s27, s27, s22")
    a("s_mul_i32 s82, s25, 448\ns_cmp_eq_u32 s3, 1\ns_cselect_b32 s76, 320, 0\ns_cselect_b32 s77, 0xc0, 0\ns_cselect_b32 s83, 64, 0x100\ns_cselect_b32 s69, 0, 0x180")
    a("s_cselect_b32 s70, 0, 0x80\ns_add_u32 s77, s77, s70")
    a("s_cmp_eq_u32 s26, 1\ns_cselect_b32 s76, s76, s83\ns_cselect_b32 s77, s77, s69\ns_add_u32 s76, s76, s82\ns_add_u32 s77, s77, s82")
    def order_table(dst, lag, segs):
        if not lag:
            a(f"v_mov_b32 v{dst}, v2"); return
        a(f"v_subrev_u32 v5, s72, v2\nv_add_u32 v5, {lag}, v5\nv_and_b32 v5, 3, v5")
        a(f"v_cmp_ge_u32 vcc, {lag}, v5\nv_mov_b32 v36, -1\nv_mov_b32 v37, {lag}\nv_cndmask_b32 v6, 0, v36, vcc")
        a(f"v_cmp_eq_u32 vcc, 0, v5\nv_sub_u32 v5, v2, v5\ns_nop 0\nv_cndmask_b32 v6, v6, v37, vcc")
        a(f"v_mov_b32 v36, 0")
        for s, e in segs:
            a(f"v_subrev_u32 v37, {s}, v5\nv_cmp_gt_u32 vcc, {e - s - lag}, v37\ns_nop 1\nv_cndmask_b32 v36, v36, v6, vcc")
        a(f"v_add_u32 v{dst}, v2, v36")
    order_table(16, LAG1, [(0, 32)])
    a("s_lshl_b32 s82, s24, 19\ns_lshl_b32 s65, s20, 12\ns_add_u32 s82, s82, s65\nv_add_u32 v3, s82, v4")
    a("v_lshrrev_b32 v36, 3, v2\ns_lshl_b32 s82, s20, 3\nv_add_u32 v36, s82, v36")
    a("v_bfe_u32 v5, v2, 4, 1\ns_lshl_b32 s82, s22, 1\nv_or_b32 v5, s82, v5\nv_lshlrev_b32 v5, 1, v5\nv_and_b32 v6, 7, v2\nv_xor_b32 v5, v5, v6\nv_lshlrev_b32 v5, 4, v5")
    a("s_lshl_b32 s82, s25, 7\ns_cmp_eq_u32 s26, 0\ns_cselect_b32 s83, 2048, 0\ns_add_u32 s82, s82, s83")
    a("v_mul_u32_u24 v7, 6144, v36\nv_add_u32 v7, v7, v5\nv_add_u32 v7, s82, v7")
    a("v_mul_u32_u24 v8, 7168, v36\nv_add_u32 v9, v8, v5\nv_add_u32 v8, s76, v9\nv_add_u32 v9, s77, v9")
    a("s_lshl_b32 s64, s20, 10\ns_add_u32 s64, s64, 0x10000\ns_mov_b32 s68, 0")
    a("s_waitcnt lgkmcnt(0)")
    srd(a, 28, "s10", "s11", WS_BYTES)
    srd(a, 32, "s6", "s7", 6144 * 1024)
    srd(a, 36, "s12", "s13", 7168 * 1024)
    srd(a, 40, "s14", "s15", 7168 * 1024)
    a("s_cmp_eq_u32 s21, 0\ns_cselect_b32 s44, s12, s14\ns_cselect_b32 s45, s13, s15\ns_and_b32 s45, s45, 0xffff")
    a(f"s_mov_b32 s46, {7168*1024}\ns_mov_b32 s47, 0x20000")
    a("s_cmp_eq_u32 s26, 1\ns_cbranch_scc1 L_typeQ")

    A0, A1, B0, B1 = 0, 32, 64, 104
    def accn(i, j):
        if j < 2: return ("a", 144 + (j * 8 + i) * 4)
        if j < 8: return ("v", 48 + ((j - 2) * 8 + i) * 4)
        if i < 2: return ("v", 240 + ((j - 8) * 2 + i) * 4)
        return ("a", 208 + ((j - 8) * 6 + i - 2) * 4)
    acc = lambda i, j: q4(*accn(i, j))
    def kcalc1():
        return ["v_readlane_b32 s69, v16, s68", f"s_mul_i32 s70, s69, {32*6144}", f"s_mul_i32 s71, s69, {32*7168}", "s_lshl_b32 s69, s69, 14", "s_add_u32 s68, s68, 1"]
    def dmas1(typ, st):
        out = [(f"s_add_u32 m0, s65, {st*16384}", "buffer_load_dwordx4 v3, s[28:31], s69 offen lds")]
        for p in range(1, 4): out.append((None, f"buffer_load_dwordx4 v3, s[28:31], s69 offen offset:{p*1024} lds"))
        if typ == "Q": sl = [(32, 7, 70, 0), (36, 8, 71, 0), (40, 8, 71, 0), (36, 9, 71, 0), (40, 9, 71, 0)]
        else:          sl = [(32, 7, 70, 0), (36, 8, 71, 0), (40, 8, 71, 0), (32, 7, 70, 2048), (44, 9, 71, 0)]
        for p, (sr, vo, so, imm) in enumerate(sl):
            out.append((f"s_add_u32 m0, s64, {st*20480 + p*4096 - imm}", f"buffer_load_dwordx4 v{vo}, s[{sr}:{sr+3}], s{so} offen offset:{imm} lds"))
        return out
    def reads1(typ, st):
        A = A1 if st & 1 else A0; B = B1 if st & 1 else B0
        out = [f"ds_read_b128 a[{A+4*i}:{A+4*i+3}], v10 offset:{st*16384 + i*1024}" for i in range(8)]
        va = (11, 12, 13) if st < 2 else (14, 15, 1)
        for j in range(10):
            p, cbi = j >> 1, j & 1
            base = (st & 1) * 20480 + p * 4096
            if typ == "KV" and p == 4: v, o0, o1 = va[2], base + cbi * 2048, base + cbi * 2048 + 256
            else: v, o0, o1 = va[cbi], base, base + 512
            out.append(f"ds_read_b64_tr_b16 a[{B+4*j}:{B+4*j+1}], v{v} offset:{o0}")
            out.append(f"ds_read_b64_tr_b16 a[{B+4*j+2}:{B+4*j+3}], v{v} offset:{o1}")
        return out
    def mfmas1(typ, st, jorder=range(10)):
        A = A1 if st & 1 else A0; B = B1 if st & 1 else B0
        out = []
        for n, j in enumerate(jorder):
            nt = (typ == "KV" and (j >> 1) in (0, 3))
            ii = list(range(8))
            if n & 1: ii.reverse()
            for i in ii:
                x = q4("a", A + 4 * i); w = q4("a", B + 4 * j)
                op = (x, w) if nt else (w, x)
                out.append(f"v_mfma_f32_16x16x32_bf16 {acc(i,j)}, {op[0]}, {op[1]}, {acc(i,j)}")
        return out
    def step1(typ, st, dma, rd, tail, extra=(), jorder=range(10)):
        it = list(extra)
        if rd:
            for k, r in enumerate(reads1(typ, (st + 1) & 3)): it.append((int(1 + k * o.get("ds1", 2.5)), "d", r))
        if dma:
            kc = kcalc1()
            it.append((0, "v", kc[0]))
            for k in range(1, 5): it.append((k, "s", kc[k]))
            for k, (m, d) in enumerate(dmas1(typ, st)):
                pos = int(o.get("dma1s", 6) + k * o.get("dma1", 8))
                if m: it.append((pos - 1, "s", m))
                it.append((pos, "V", d))
        for l in sched(mfmas1(typ, st, jorder), it, tail): a(l)

    FA, FB = [0, 32], [64, 96]
    accF = lambda i, cb: q4("a", 128 + 16 * i + 4 * cb)
    accS = lambda i, cb: q4("v", 48 + 16 * i + 4 * cb)
    PQ, XR, PART = 80, 112, 128
    ASC = o.get("asc", "sc1")
    def kcalc2():
        return ["v_readlane_b32 s69, v17, s68", "s_lshl_b32 s70, s69, 17", "s_lshl_b32 s69, s69, 14", "s_add_u32 s71, s70, 16384", "s_add_u32 s68, s68, 1"]
    def dmas2A(ph, st):
        va, ma, na = (20, 65, 4) if ph == "F" else (21, 66, 2)
        return [(f"s_add_u32 m0, s{ma}, {st*16384}" if p == 0 else None, f"buffer_load_dwordx4 v{va}, s[28:31], s69 offen offset:{p*1024} {ASC} lds") for p in range(na)]
    def dmas2B(ph, st):
        sb = 48 if ph == "F" else 52
        return [(f"s_add_u32 m0, s67, {st*16384 + pn*8192 + rh*1024 - pn*128}", f"buffer_load_dwordx4 v22, s[{sb}:{sb+3}], s{71 if rh else 70} offen offset:{pn*128} lds")
                for rh in range(2) for pn in range(2)]
    def reads2(ph, st):
        A = FA[st & 1]; B = FB[st & 1]; out = []
        for kk in range(2):
            for i in range(4 if ph == "F" else 2):
                out.append(f"ds_read_b128 a[{A+16*kk+4*i}:{A+16*kk+4*i+3}], v{24 if i < 2 else 25} offset:{st*16384 + kk*8192 + (i&1)*1024}")
            for cb in range(4):
                for n in range(2):
                    r = B + 16*kk + 4*cb + 2*n
                    out.append(f"ds_read_b64_tr_b16 a[{r}:{r+1}], v{26+cb} offset:{st*16384 + kk*4096 + n*2048}")
        return out
    def mfmas2(ph, st):
        A = FA[st & 1]; B = FB[st & 1]; out = []
        for kk in range(2):
            for i in ([2, 3, 0, 1] if ph == "F" else [0, 1]):
                cbs = list(range(4))
                if i & 1: cbs.reverse()
                for cb in cbs:
                    c = accF(i, cb) if ph == "F" else accS(i, cb)
                    out.append(f"v_mfma_f32_16x16x32_bf16 {c}, {q4('a', B+16*kk+4*cb)}, {q4('a', A+16*kk+4*i)}, {c}")
        return out
    def step2(ph, st, dph, rph, tail, extra=()):
        mf = mfmas2(ph, st); n = len(mf); it = list(extra)
        if rph:
            rs = reads2(rph, (st + 1) & 3)
            lim = n - (7 if ph == "F" else 3)
            for k, r in enumerate(rs): it.append((1 + int(k * (lim - 1) / len(rs)) if ph == "F" else int(k * lim / len(rs)), "d", r))
        if dph:
            kc = kcalc2()
            ds = dmas2A(dph, st) + dmas2B(dph, st)
            if ph == "F":
                it.append((0, "v", kc[0]))
                for k in range(1, 5): it.append((k, "s", kc[k]))
                pos0, stride = 6, 3.4
            else:
                it.append((0, "v", kc[0]))
                for k in range(1, 5): it.append(((k + 1) // 2, "s", kc[k]))
                pos0, stride = 4, 2
            for k, (m, d) in enumerate(ds):
                pos = int(pos0 + k * stride)
                if m: it.append((pos - 1, "s", m))
                it.append((pos, "V", d))
        for l in sched(mf, it, tail, strict=(ph == "F")): a(l)

    def fetch(i, j, dst):
        k, r = accn(i, j)
        if k == "v": return r
        for e in range(4): a(f"v_accvgpr_read_b32 v{dst+e}, a{r+e}")
        return dst
    def gelu(pairs, tgrp, cgrp, out):
        cgrp = list(cgrp); gs, us = [], []
        for (i, jg, ju) in pairs:
            gs.append(fetch(i, jg, cgrp.pop() if accn(i, jg)[0] == "a" else None))
            us.append(fetch(i, ju, cgrp.pop() if accn(i, ju)[0] == "a" else None))
        H = [(n, h) for n in range(len(pairs)) for h in (0, 2)]; ts = tgrp
        for n, h in H: a(f"v_pk_mul_f32 {pr(ts[n]+h)}, {pr(gs[n]+h)}, {pr(gs[n]+h)}")
        for n, h in H: a(f"v_pk_fma_f32 {pr(ts[n]+h)}, {pr(ts[n]+h)}, s[80:81], v[32:33]")
        for n, h in H: a(f"v_pk_mul_f32 {pr(ts[n]+h)}, {pr(ts[n]+h)}, {pr(gs[n]+h)}")
        for n in range(len(pairs)):
            for e in range(4): a(f"v_exp_f32 v{ts[n]+e}, v{ts[n]+e}")
        for n, h in H: a(f"v_pk_mul_f32 {pr(us[n]+h)}, {pr(gs[n]+h)}, {pr(us[n]+h)}")
        for n, h in H: a(f"v_pk_add_f32 {pr(ts[n]+h)}, {pr(ts[n]+h)}, 1.0 op_sel_hi:[1,0]")
        for n in range(len(pairs)):
            for e in range(4): a(f"v_rcp_f32 v{ts[n]+e}, v{ts[n]+e}")
        for n, h in H: a(f"v_pk_mul_f32 {pr(ts[n]+h)}, {pr(ts[n]+h)}, {pr(us[n]+h)}")
        for n, h in H: a(f"v_cvt_pk_bf16_f32 v{out+2*n+h//2}, v{ts[n]+h}, v{ts[n]+h+1}")
    def phi(blocks, xg, tg, out):
        xs = [fetch(i, j, xg[n]) for n, (i, j) in enumerate(blocks)]
        H = [(n, h) for n in range(len(blocks)) for h in (0, 2)]
        for n, h in H: a(f"v_pk_mul_f32 {pr(tg[n]+h)}, {pr(xs[n]+h)}, s[18:19]")
        for n in range(len(blocks)):
            for e in range(4): a(f"v_exp_f32_e64 v{tg[n]+e}, v{tg[n]+e} clamp")
        for n in range(len(blocks)):
            for e in range(4): a(f"v_max_f32 v{xs[n]+e}, v34, v{xs[n]+e}")
        for n, h in H: a(f"v_pk_add_f32 {pr(tg[n]+h)}, {pr(tg[n]+h)}, {pr(xs[n]+h)}")
        for n, h in H: a(f"v_cvt_pk_bf16_f32 v{out+2*n+h//2}, v{tg[n]+h}, v{tg[n]+h+1}")
    def setflag(val, soff):
        a(f"v_mov_b32 v6, {val}\ns_mov_b64 exec, 1\nbuffer_store_dword v6, v35, s[28:31], {soff} offen sc1\ns_mov_b64 exec, -1")
    def spin(name, load, cmp):
        a(f"s_mov_b32 s3, 0\n{name}:\n{load}\ns_waitcnt vmcnt(0)\n{cmp}\ns_add_u32 s3, s3, 1\ns_cbranch_vccz {name}_ok")
        a(f"s_sleep 1\ns_cmp_lt_u32 s3, {SPIN}\ns_cbranch_scc1 {name}\n{name}_ok:")
    HLOAD = "buffer_load_dword v31, v19, s[28:31], 0 offen sc1"

    for typ in ["KV", "Q"]:
        a(f"L_type{typ}:")
        if typ == "KV":
            a("v_lshrrev_b32 v36, 2, v2\ns_lshl_b32 s82, s22, 4\nv_add_u32 v36, s82, v36")
            a("v_lshrrev_b32 v5, 5, v2\nv_lshlrev_b32 v5, 1, v5\nv_and_b32 v6, 3, v2\nv_xor_b32 v5, v5, v6\nv_lshlrev_b32 v5, 4, v5")
            a("v_mul_u32_u24 v9, 7168, v36\nv_add_u32 v9, v9, v5\nv_add_u32 v9, s77, v9")
        for st in range(4):
            kc = kcalc1(); a(kc[0]); a("s_nop 0")
            for l in kc[1:]: a(l)
            for m, d in dmas1(typ, st):
                if m: a(m); a("s_nop 0")
                a(d)
        a("s_lshl_b32 s82, s21, 13\nv_add_u32 v10, s82, v4")
        a("v_lshrrev_b32 v36, 4, v2\nv_bfe_u32 v5, v2, 2, 2\nv_lshl_add_u32 v6, v36, 3, v5")
        a("v_bfe_u32 v5, v2, 3, 2")
        a("s_lshl_b32 s82, s22, 1\nv_xor_b32 v5, s82, v5\nv_lshlrev_b32 v5, 5, v5\nv_lshl_add_u32 v11, v6, 7, v5")
        a("v_and_b32 v5, 3, v2\nv_lshl_add_u32 v11, v5, 3, v11\nv_add_u32 v11, 0x10000, v11")
        a("v_xor_b32 v12, 32, v11")
        a("v_and_b32 v36, 1, v36\nv_xor_b32 v36, s22, v36\nv_lshlrev_b32 v36, 5, v36\nv_lshl_add_u32 v13, v6, 6, v36\nv_lshl_add_u32 v13, v5, 3, v13\nv_add_u32 v13, 0x10000, v13")
        a("v_add_u32 v14, 40960, v11\nv_add_u32 v15, 40960, v12\nv_add_u32 v1, 40960, v13")
        a(f"s_getpc_b64 s[100:101]\ns_add_u32 s100, s100, 12\ns_addc_u32 s101, s101, 0\ns_branch L_common_setup")
        a("s_waitcnt vmcnt(27)\ns_barrier")
        for r in reads1(typ, 0): a(r)
        a("s_mov_b32 s72, 0")
        a("s_waitcnt vmcnt(18) lgkmcnt(0)\ns_barrier")
        stamp(1)
        a(".p2align 6")
        a(f"L_loop1{typ}:")
        W = ["s_waitcnt vmcnt(18) lgkmcnt(0)", "s_barrier"]
        for st in range(3): step1(typ, st, True, True, W)
        step1(typ, 3, True, True, W + [f"s_cbranch_scc1 L_loop1{typ}"], extra=[(76, "s", "s_add_u32 s72, s72, 1"), (77, "s", "s_cmp_lt_u32 s72, 7")])
        vm = VMQ(); vm.op(30, 9); vm.op(31, 9)
        ex = []
        if o.get("touch", 1):
            ex = [(10, "V", "buffer_load_dword v23, v38, s[48:51], 0 offen"), (30, "V", "buffer_load_dword v23, v39, s[48:51], 0 offen"),
                  (50, "V", "buffer_load_dword v23, v40, s[52:55], 0 offen"), (70, "V", "global_load_dword v23, v41, s[4:5]")]
            vm.op("touch", 4)
        step1(typ, 0, False, True, [f"s_waitcnt vmcnt({vm.need(30)}) lgkmcnt(0)", "s_barrier"], extra=ex)
        step1(typ, 1, False, True, [f"s_waitcnt vmcnt({vm.need(31)}) lgkmcnt(0)", "s_barrier"])
        step1(typ, 2, False, True, ["s_waitcnt lgkmcnt(0)", "s_barrier"], extra=[(0, "s", "s_mov_b32 s68, 0")])
        ex = []
        for t in range(4):
            kc = kcalc2(); p0 = 20 * t
            ex.append((p0, "v", kc[0]))
            for k in range(1, 5): ex.append((p0 + k, "s", kc[k]))
            for k, (m, d) in enumerate(dmas2B("F", t)):
                ex.append((p0 + 5 + 4 * k, "s", m)); ex.append((p0 + 6 + 4 * k, "V", d)); vm.op("B")
        step1(typ, 3, False, False, [], extra=ex, jorder=([2, 3, 4, 5, 0, 1, 6, 7, 8, 9] if typ == "Q" else [6, 7, 0, 1, 2, 3, 4, 5, 8, 9]))
        stamp(2)
        def koff(dst, src, add):
            a(f"s_lshr_b32 s{dst}, s{src}, 6\ns_add_u32 s{dst}, s{dst}, {add}\ns_lshl_b32 s{dst}, s{dst}, 13\ns_add_u32 s{dst}, s{dst}, s78\ns_add_u32 s{dst+1}, s{dst}, 4096")
        def wide(jg, ju, tag, cg, hook=None):
            for i in range(8):
                ob = accn(i, jg)[1]
                gelu([(i, jg, ju), (i, jg + 1, ju + 1)], [36, 40], cg, ob)
                a(f"buffer_store_dwordx4 {q4('v', ob)}, v4, s[28:31], s{70 if i < 4 else 71} offen offset:{(i&3)*1024} sc1"); vm.op(tag)
                if hook: hook(i)
        if typ == "KV":
            free = []
            for eb in range(2):
                for ip in range(4):
                    r0, r1 = accn(2*ip, 6+eb)[1], accn(2*ip+1, 6+eb)[1]
                    a(f"v_cvt_pk_bf16_f32 v{r0}, v{r0}, v{r0+1}\nv_cvt_pk_bf16_f32 v{r0+1}, v{r0+2}, v{r0+3}\nv_cvt_pk_bf16_f32 v{r0+2}, v{r1}, v{r1+1}\nv_cvt_pk_bf16_f32 v{r0+3}, v{r1+2}, v{r1+3}")
                    free.append(r1)
            KVA = free[:6]; ONES = free[6]
            for e in range(4): a(f"v_mov_b32 v{ONES+e}, 0x3f803f80")
            for ip in range(4):
                for db in range(2):
                    P = 44 if db else free[7]
                    phi([(2*ip, db), (2*ip+1, db)], [8, 12], [36, 40], P)
                    a("s_nop 1")
                    for eb in range(2):
                        d = q4("v", KVA[2*db+eb])
                        a(f"v_mfma_f32_16x16x32_bf16 {d}, {q4('v', P)}, {q4('v', accn(2*ip, 6+eb)[1])}, {d if ip else 0}")
                    d = q4("v", KVA[4+db])
                    a(f"v_mfma_f32_16x16x32_bf16 {d}, {q4('v', P)}, {q4('v', ONES)}, {d if ip else 0}")
            koff(70, 76, "s22")
            a(f"s_mul_i32 s82, s22, 6144\ns_add_u32 s82, s82, 0x20000\nv_add_u32 v5, s82, v4")
            RB = [accn(2*ip, 6+eb)[1] for eb in range(2) for ip in range(3)]
            a("s_nop 4\ns_cmp_eq_u32 s21, 0\ns_cbranch_scc1 L_kv_w0")
            for b in range(6): a(f"ds_write_b128 v5, {q4('v', KVA[b])} offset:{b*1024}")
            a("s_waitcnt lgkmcnt(0)\ns_barrier\ns_branch L_kv_join")
            a("L_kv_w0:\ns_barrier")
            for b in range(6): a(f"ds_read_b128 {q4('v', RB[b])}, v5 offset:{b*1024}")
            a(f"s_lshl_b32 s82, s27, 3\ns_add_u32 s82, s82, s24\ns_mul_i32 s82, s82, 6144\ns_add_u32 s82, s82, {KVP_OFF}\ns_add_u32 s83, s82, 4096")
            a("s_waitcnt lgkmcnt(0)")
            for b in range(6):
                for h in (0, 2): a(f"v_pk_add_f32 {pr(KVA[b]+h)}, {pr(KVA[b]+h)}, {pr(RB[b]+h)}")
            for b in range(6): a(f"buffer_store_dwordx4 {q4('v', KVA[b])}, v4, s[28:31], s{82 if b < 4 else 83} offen offset:{(b&3)*1024} sc1")
            a("L_kv_join:")
            vm.op("kvp", 6)
            def hook(i):
                if i == o.get("kvflag_at", 4):
                    a(f"s_waitcnt vmcnt({vm.need('kvp')})\ns_cmp_eq_u32 s21, 0\ns_cbranch_scc0 L_kv_nf")
                    a(f"s_lshl_b32 s82, s27, 7\ns_lshl_b32 s83, s24, 2\ns_add_u32 s82, s82, s83\ns_add_u32 s82, s82, {KVF}")
                    setflag(1, "s82"); a("L_kv_nf:")
            wide(2, 4, "h1", [], hook)
            koff(70, 77, 0); a("s_lshl_b32 s82, s22, 3\ns_add_u32 s70, s70, s82\ns_add_u32 s71, s71, s82")
            for i in (0, 2, 4, 6):
                gelu([(i, 8, 9), (i+1, 8, 9)], [36, 40], [8, 12, 44, RB[0]], 112 + 2*i)
            a(f"s_waitcnt vmcnt({vm.need('h1')})"); setflag(2, "s79"); vm.op("flag")
            for i in range(8):
                a(f"buffer_store_dwordx2 {pr(112+2*i)}, v4, s[28:31], s{70 if i < 4 else 71} offen offset:{(i&3)*1024} sc1"); vm.op("h2")
            a("s_mov_b32 s17, 3")
        else:
            koff(70, 76, "s22")
            wide(2, 4, "h1", [])
            koff(70, 77, "s22")
            def hook(i):
                if i == o.get("hflag_at", 4):
                    a(f"s_waitcnt vmcnt({vm.need('h1')})"); setflag(1, "s79"); vm.op("flag")
            wide(6, 8, "h2", [8, 12], hook)
            for i in range(8): phi([(i, 0), (i, 1)], [8, 12], [36, 40], PQ + 4 * i)
            a("s_mov_b32 s17, 2")
        stamp(3)
        if typ == "KV": a("s_branch L_g2")

    a("L_g2:")
    for r in range(128, 192): a(f"v_accvgpr_write_b32 a{r}, 0")
    for r in range(48, 80): a(f"v_mov_b32 v{r}, 0")
    a("s_waitcnt vmcnt(0)"); setflag("s17", "s79")
    a("v_and_b32 v5, 3, v18")
    spin("L_spinA", HLOAD, "v_cmp_gt_u32 vcc, v5, v31")
    stamp(4)
    vm = VMQ()
    a("s_mov_b32 s68, 0")
    for t in range(4):
        kc = kcalc2(); a(kc[0]); a("s_nop 0"); a(kc[2]); a(kc[4])
        for m, d in dmas2A("F", t):
            if m: a(m); a("s_nop 0")
            a(d); vm.op(("F", t))
    a("s_mov_b32 s16, 32768")
    for i in range(2):
        for cb in range(4):
            a(f"buffer_load_dwordx2 {pr(XR+8*i+2*cb)}, v30, s[56:59], {'s16' if i else 0} offen offset:{cb*32}"); vm.op("x")
    KVLOAD = "buffer_load_dword v47, v46, s[28:31], 0 offen sc1"
    a(f"s_lshl_b32 s82, s27, 7\ns_add_u32 s82, s82, {KVF}\nv_and_b32 v46, 7, v2\nv_lshl_add_u32 v46, v46, 2, s82")
    a(KVLOAD); vm.op("kvf")
    a(f"s_waitcnt vmcnt({vm.need(('F',0))})\ns_barrier")
    for r in reads2("F", 0): a(r)
    a("s_mov_b32 s72, 0")
    a(f"s_waitcnt vmcnt({vm.need(('F',1))}) lgkmcnt(0)\ns_barrier")
    stamp(5)
    a(".p2align 6\nL_loopF:")
    NW = [16, 17, 17, 16]
    for st in range(4):
        ex = [(2, "V", HLOAD)] if st == 1 else []
        if st == 3: ex = [(26, "s", "s_add_u32 s72, s72, 2"), (28, "v", "v_bfe_u32 v5, v18, s72, 2")]
        step2("F", st, "F", "F", [f"s_waitcnt vmcnt({NW[st]}) lgkmcnt(0)", "s_barrier"], extra=ex)
    a("v_cmp_gt_u32 vcc, v5, v31\ns_cmp_lt_u32 s72, s15\ns_cbranch_vccnz L_slowF\nL_backF:\ns_cbranch_scc1 L_specialF\nL_contF:\ns_cmp_lt_u32 s72, 12\ns_cbranch_scc1 L_loopF")
    for n in range(6):
        for st in range(4):
            t = 4 * n + st
            if st == 1: vm.op("hf")
            vm.op(("F", t + 4), 8)
            req = vm.required(("F", t + 2)); assert req is None or NW[st] <= req, (n, st, req)
            vm.wait(NW[st])
        assert "hf" not in vm.q and "kvf" not in vm.q and "x" not in vm.q
    def W2(tag, bar=True): return [f"s_waitcnt vmcnt({vm.need(tag)}) lgkmcnt(0)"] + (["s_barrier"] if bar else [])
    vm.op(("S", 0), 6); step2("F", 0, "S", "F", W2(("F", 26)))
    vm.op(("S", 1), 6); step2("F", 1, "S", "F", W2(("F", 27)))
    vm.op(("S", 2), 6); step2("F", 2, "S", "F", W2(("S", 0)))
    vm.op(("S", 3), 6); step2("F", 3, "S", "S", [])
    a(f"s_lshl_b32 s82, s14, 13\ns_add_u32 s82, s82, {FP_OFF}\ns_add_u32 s83, s82, 4096")
    for i in (2, 3):
        for cb in range(4):
            a(f"buffer_store_dwordx4 {accF(i,cb)}, v4, s[28:31], s{82 if i == 2 else 83} offen offset:{cb*1024} sc1"); vm.op("fp")
    for l in W2(("S", 1)): a(l)
    stamp(6)
    PLOAD = "buffer_load_dword v31, v35, s[28:31], s13 offen sc1"
    TF, TC, TG = o.get("tf", 5), o.get("tc", 7), o.get("tg", 10)
    a(f"s_xor_b32 s12, s14, 4\ns_lshl_b32 s13, s12, 5\ns_add_u32 s13, s13, {FPF}\ns_mov_b32 s18, {f2u(-LOG2E):#x}\ns_mov_b32 s19, s18")
    def silu_part(i):
        F = 160 + 16*i; P = PART + 16*i; T = 224; X = 192 + 16*i
        for e in range(16): a(f"v_accvgpr_read_b32 v{F+e}, a{128+16*i+e}")
        for h in range(0, 16, 2): a(f"v_pk_add_f32 {pr(F+h)}, {pr(F+h)}, {pr(P+h)}")
        for h in range(0, 16, 2): a(f"v_pk_mul_f32 {pr(T+h)}, {pr(F+h)}, s[18:19]")
        for e in range(16): a(f"v_exp_f32 v{T+e}, v{T+e}")
        for k in range(4): a(f"v_lshlrev_b32 v{X+2*k}, 16, v{XR+8*i+k}\nv_and_b32 v{X+2*k+1}, 0xffff0000, v{XR+8*i+k}")
        for h in range(0, 16, 2): a(f"v_pk_add_f32 {pr(T+h)}, {pr(T+h)}, 1.0 op_sel_hi:[1,0]")
        for e in range(16): a(f"v_rcp_f32 v{T+e}, v{T+e}")
        for k in range(4, 8): a(f"v_lshlrev_b32 v{X+2*k}, 16, v{XR+8*i+k}\nv_and_b32 v{X+2*k+1}, 0xffff0000, v{XR+8*i+k}")
        for h in range(0, 16, 2): a(f"v_pk_mul_f32 {pr(F+h)}, {pr(F+h)}, {pr(T+h)}")
    for t in range(16):
        st = t & 3
        dph = "S" if t < 12 else None; rph = "S" if t < 15 else None
        if t == TF: a(PLOAD); vm.op("pf")
        if dph: vm.op(("S", t + 4), 6)
        tail = []
        if t + 2 < 16:
            n = vm.required(("S", t + 2))
            if t == TC and vm.required("pf") is not None: n = min(n, vm.required("pf"))
            if t == TG and vm.required("pp") is not None: n = min(n, vm.required("pp"))
            if t == 2: n = min(n, vm.required("fp")) if vm.required("fp") is not None else n
            vm.wait(n)
            tail = [f"s_waitcnt vmcnt({n}) lgkmcnt(0)", "s_barrier"]
        elif rph: tail = ["s_waitcnt lgkmcnt(0)"]
        step2("S", st, dph, rph, tail)
        if t == 2:
            assert "fp" not in vm.q
            a(f"s_lshl_b32 s82, s14, 5\ns_add_u32 s82, s82, {FPF}"); setflag(1, "s82"); vm.op("flag")
        if t == TC:
            assert "pf" not in vm.q
            a("v_cmp_ne_u32 vcc, 1, v31\ns_nop 0\ns_cbranch_vccz L_spinP_ok")
            spin("L_spinP", PLOAD, "v_cmp_ne_u32 vcc, 1, v31")
            a(f"s_lshl_b32 s82, s12, 13\ns_add_u32 s82, s82, {FP_OFF}\ns_add_u32 s83, s82, 4096")
            for i in range(2):
                for cb in range(4):
                    a(f"buffer_load_dwordx4 {q4('v', PART+16*i+4*cb)}, v4, s[28:31], s{82 if i == 0 else 83} offen offset:{cb*1024} sc1"); vm.op("pp")
        if t == TG:
            assert "pp" not in vm.q
            silu_part(0)
        if t == TG + 1: silu_part(1)
    a("s_nop 4")
    for i in range(2):
        F = 160 + 16*i; S = 48 + 16*i; X = 192 + 16*i
        for h in range(0, 16, 2): a(f"v_pk_fma_f32 {pr(F+h)}, {pr(F+h)}, {pr(S+h)}, {pr(X+h)}")
        for k in range(8): a(f"v_cvt_pk_bf16_f32 v{224+8*i+k}, v{F+2*k}, v{F+2*k+1}")
        for cb in range(4):
            a(f"buffer_store_dwordx2 {pr(224+8*i+2*cb)}, v30, s[60:63], {'s16' if i else 0} offen offset:{cb*32}")
    if TS:
        a("s_waitcnt vmcnt(0)"); stamp(7); a("s_waitcnt lgkmcnt(0)")
        a(f"s_add_u32 s28, s28, {TS_OFF + 65536}\ns_addc_u32 s29, s29, 0")
        for k in range(8): a(f"v_mov_b32 v{16+k}, s{84+2*k}")
        a(f"s_lshl_b32 s3, s2, 2\ns_add_u32 s3, s3, s20\ns_lshl_b32 s3, s3, 5\nv_mov_b32 v1, s3\ns_mov_b64 exec, 1")
        a("buffer_store_dwordx4 v[16:19], v1, s[28:31], 0 offen\nbuffer_store_dwordx4 v[20:23], v1, s[28:31], 0 offen offset:16")
    a("L_end:\ns_endpgm")

    a("L_slowF:")
    spin("L_spinF", HLOAD, "v_cmp_gt_u32 vcc, v5, v31")
    a("s_cmp_lt_u32 s72, s15\ns_branch L_backF")
    a("L_specialF:")
    a("s_cmp_eq_u32 s72, 4\ns_cbranch_scc1 L_sp2\ns_cmp_eq_u32 s72, 6\ns_cbranch_scc1 L_sp3")
    a("v_cmp_ne_u32 vcc, 1, v47\ns_nop 0\ns_cbranch_vccz L_spinK_ok")
    spin("L_spinK", KVLOAD, "v_cmp_ne_u32 vcc, 1, v47")
    a(f"s_lshl_b32 s82, s27, 3\ns_lshl_b32 s83, s21, 2\ns_add_u32 s82, s82, s83\ns_mul_i32 s82, s82, 6144\ns_add_u32 s82, s82, {KVP_OFF}")
    for k in range(24):
        if k and k % 4 == 0: a("s_add_u32 s82, s82, 4096")
        a(f"buffer_load_dwordx4 {q4('v', PART+4*k)}, v4, s[28:31], s82 offen offset:{(k&3)*1024} sc1")
    a("s_branch L_contF")
    a("L_sp2:")
    P = PART
    for r in range(0, 24, 2): a(f"v_pk_add_f32 {pr(P+r)}, {pr(P+r)}, {pr(P+24+r)}")
    for r in range(0, 24, 2): a(f"v_pk_add_f32 {pr(P+48+r)}, {pr(P+48+r)}, {pr(P+72+r)}")
    for r in range(0, 24, 2): a(f"v_pk_add_f32 {pr(P+r)}, {pr(P+r)}, {pr(P+48+r)}")
    a("s_mul_i32 s82, s20, 6144\ns_add_u32 s82, s82, 0x20000\nv_add_u32 v5, s82, v4\ns_xor_b32 s82, s20, 2\ns_mul_i32 s82, s82, 6144\ns_add_u32 s82, s82, 0x20000\nv_add_u32 v6, s82, v4")
    for b in range(6): a(f"ds_write_b128 v5, {q4('v', P+4*b)} offset:{b*1024}")
    a("s_waitcnt lgkmcnt(0)\ns_barrier")
    for b in range(6): a(f"ds_read_b128 {q4('v', P+24+4*b)}, v6 offset:{b*1024}")
    a(f"s_lshl_b32 s82, s27, 13\ns_add_u32 s82, s82, s78\ns_sub_u32 s82, s82, {32*8192}\ns_add_u32 s83, s82, 4096")
    a("s_waitcnt lgkmcnt(0)")
    for r in range(0, 24, 2): a(f"v_pk_add_f32 {pr(P+r)}, {pr(P+r)}, {pr(P+24+r)}")
    for eb in range(2):
        for db in range(2):
            r = P + 8*db + 4*eb
            a(f"v_cvt_pk_bf16_f32 v{36+4*eb+2*db}, v{r}, v{r+1}\nv_cvt_pk_bf16_f32 v{36+4*eb+2*db+1}, v{r+2}, v{r+3}")
    for db in range(2):
        r = P + 16 + 4*db
        a(f"v_cvt_pk_bf16_f32 v{8+2*db}, v{r}, v{r+1}\nv_cvt_pk_bf16_f32 v{8+2*db+1}, v{r+2}, v{r+3}")
    a("s_nop 1")
    D = lambda i: P + 12 * i
    for i in range(8):
        d = D(i); q = q4("v", PQ + 4 * i)
        a(f"v_mfma_f32_16x16x32_bf16 {q4('v', d+8)}, v[8:11], {q}, 0")
        a(f"v_mfma_f32_16x16x32_bf16 {q4('v', d)}, v[36:39], {q}, 0")
        a(f"v_mfma_f32_16x16x32_bf16 {q4('v', d+4)}, v[40:43], {q}, 0")
    a("s_nop 1")
    for i in range(8): a(f"v_add_f32 v{D(i)+8}, v34, v{D(i)+8}")
    for i in range(8): a(f"v_rcp_f32 v{D(i)+8}, v{D(i)+8}")
    for i in range(8):
        d = D(i)
        for h in range(0, 8, 2): a(f"v_pk_mul_f32 {pr(d+h)}, {pr(d+h)}, {pr(d+8)} op_sel_hi:[1,0]")
        for h in range(4): a(f"v_cvt_pk_bf16_f32 v{d+8+h}, v{d+2*h}, v{d+2*h+1}")
        a(f"buffer_store_dwordx4 {q4('v', d+8)}, v4, s[28:31], s{82 if i < 4 else 83} offen offset:{(i&3)*1024} sc1")
    a("s_branch L_contF")
    a("L_sp3:")
    setflag(3, "s79")
    a("s_branch L_contF")

    a("L_common_setup:")
    srd(a, 48, "s16", "s17", 3584 * 2048)
    srd(a, 52, "s8", "s9", 1024 * 2048)
    srd(a, 56, "s4", "s5", 4 << 20)
    srd(a, 60, "s18", "s19", 4 << 20)
    for r in range(144, 256): a(f"v_accvgpr_write_b32 a{r}, 0")
    for r in range(48, 256, 2): a(f"v_pk_mul_f32 {pr(r)}, 0, 0")
    order_table(17, LAG2, [(0, 8), (8, 28), (28, 44)])
    a("v_lshrrev_b32 v5, 1, v17\nv_mul_u32_u24 v5, 7, v5\nv_and_b32 v6, 1, v17\nv_mad_u32_u24 v5, v6, 6, v5")
    a("v_subrev_u32 v36, 8, v17\nv_lshrrev_b32 v37, 2, v36\nv_mul_u32_u24 v37, 7, v37\nv_and_b32 v36, 3, v36\nv_lshrrev_b32 v6, 1, v36\nv_add3_u32 v37, v37, v36, v6\nv_add_u32 v37, 1, v37")
    a("v_cmp_le_u32 vcc, 8, v17\nv_subrev_u32 v36, 24, v17\nv_mad_u32_u24 v36, v36, 7, 3\nv_cndmask_b32 v5, v5, v37, vcc")
    a("v_cmp_le_u32 vcc, 24, v17\ns_mul_i32 s82, s75, 28\ns_nop 0\nv_cndmask_b32 v5, v5, v36, vcc\nv_add_u32 v5, s82, v5")
    a("v_cmp_le_u32 vcc, 28, v17\nv_subrev_u32 v36, 28, v17\ns_nop 0\nv_cndmask_b32 v17, v5, v36, vcc")
    a("v_lshrrev_b32 v5, 5, v2\nv_cmp_eq_u32 vcc, s75, v5\nv_bfe_u32 v6, v2, 1, 1")
    a(f"v_xor_b32 v36, 1, v6\nv_mul_u32_u24 v36, {3 << 8}, v36\nv_add3_u32 v36, v36, v6, 8\nv_cndmask_b32 v36, 0, v36, vcc")
    a(f"v_mul_u32_u24 v6, {3 << 12}, v6\nv_add_u32 v18, v36, v6")
    a(f"s_lshl_b32 s82, s73, 8\ns_add_u32 s82, s82, {HF}\nv_lshl_add_u32 v19, v2, 2, s82")
    a(f"s_lshl_b32 s78, s24, 1\ns_add_u32 s78, s78, s21\ns_lshl_b32 s79, s78, 6\ns_lshl_b32 s82, s23, 1\ns_add_u32 s79, s79, s82\ns_add_u32 s79, s79, s22\ns_lshl_b32 s79, s79, 2\ns_add_u32 s79, s79, {HF}")
    a(f"s_mul_i32 s78, s78, {144*8192}\ns_add_u32 s78, s78, {A2_OFF + 32*8192}")
    a("s_lshl_b32 s14, s73, 3\ns_add_u32 s14, s14, s74\ns_lshl_b32 s14, s14, 1\ns_add_u32 s14, s14, s75\ns_lshl_b32 s14, s14, 2\ns_add_u32 s14, s14, s20")
    a("s_mul_i32 s15, s26, 7")
    a(f"s_mul_i32 s82, s73, {144*8192}\ns_add_u32 s82, s82, s65\ns_add_u32 s82, s82, {A2_OFF}\ns_add_u32 s83, s82, {32*8192}\nv_add_u32 v20, s83, v4")
    a("s_lshl_b32 s3, s75, 11\ns_add_u32 s83, s82, s3\nv_add_u32 v21, s83, v4\ns_add_u32 s66, s65, s3")
    a("v_lshrrev_b32 v5, 3, v2\ns_lshl_b32 s82, s20, 4\nv_add_u32 v5, s82, v5\nv_lshlrev_b32 v5, 11, v5")
    a("v_lshrrev_b32 v6, 4, v2\nv_lshlrev_b32 v6, 1, v6\nv_and_b32 v36, 7, v2\nv_xor_b32 v6, v6, v36\nv_lshl_add_u32 v5, v6, 4, v5")
    a("s_lshl_b32 s82, s74, 8\nv_add_u32 v22, s82, v5")
    a("s_lshl_b32 s67, s20, 11\ns_add_u32 s67, s67, 0x10000")
    a("s_lshl_b32 s82, s21, 12\ns_add_u32 s82, s82, s3\nv_add_u32 v24, s82, v4\nv_xor_b32 v25, 2048, v24")
    a("v_lshrrev_b32 v5, 2, v2\nv_lshlrev_b32 v5, 7, v5\nv_and_b32 v6, 3, v2\nv_lshl_add_u32 v5, v6, 3, v5")
    a("v_bfe_u32 v6, v2, 3, 2\nv_lshl_add_u32 v5, v6, 5, v5\ns_lshl_b32 s82, s22, 13\ns_add_u32 s82, s82, 0x10000\nv_add_u32 v26, s82, v5")
    a("v_xor_b32 v27, 32, v26\nv_xor_b32 v28, 64, v26\nv_xor_b32 v29, 96, v26")
    a("s_lshl_b32 s82, s73, 7\ns_lshl_b32 s83, s21, 6\ns_add_u32 s82, s82, s83\ns_lshl_b32 s83, s75, 5\ns_add_u32 s82, s82, s83")
    a("v_and_b32 v5, 15, v2\nv_add_u32 v5, s82, v5\nv_lshlrev_b32 v5, 11, v5\nv_lshrrev_b32 v6, 4, v2\nv_lshl_add_u32 v5, v6, 3, v5")
    a("s_lshl_b32 s82, s74, 8\ns_lshl_b32 s83, s22, 7\ns_add_u32 s82, s82, s83\nv_add_u32 v30, s82, v5")
    a("s_lshr_b32 s82, s2, 3\ns_lshl_b32 s82, s82, 2\ns_add_u32 s82, s82, s20\ns_lshr_b32 s83, s74, 2\ns_lshl_b32 s83, s83, 10")
    a("v_lshrrev_b32 v5, 3, v2\nv_and_b32 v6, 7, v2\nv_lshlrev_b32 v6, 7, v6\nv_lshl_add_u32 v5, v5, 11, v6\nv_add_u32 v5, s83, v5")
    a("s_lshl_b32 s83, s82, 14\nv_add_u32 v40, s83, v5")
    a(f"s_mul_i32 s3, s75, {1792*2048}\ns_add_u32 s83, s83, s3\nv_add_u32 v38, s83, v5")
    a(f"s_min_u32 s82, s82, 95\ns_lshl_b32 s83, s82, 14\ns_add_u32 s83, s83, s3\ns_add_u32 s83, s83, {1024*2048}\nv_add_u32 v39, s83, v5")
    a("s_getpc_b64 s[4:5]\nL_pcref:\ns_sub_u32 s4, s4, L_pcref-L_typeKV\ns_subb_u32 s5, s5, 0")
    a("s_lshr_b32 s82, s2, 3\ns_lshl_b32 s82, s82, 2\ns_add_u32 s82, s82, s20\ns_and_b32 s82, s82, 7\ns_lshl_b32 s82, s82, 13\nv_lshlrev_b32 v41, 7, v2\nv_add_u32 v41, s82, v41")
    a("v_min_u32 v41, L_pcref-L_typeKV, v41")
    a(f"s_mov_b32 s80, {f2u(GC1):#x}\ns_mov_b32 s81, s80\nv_mov_b32 v32, {f2u(GC0):#x}\nv_mov_b32 v33, v32")
    a(f"s_mov_b32 s18, {f2u(LOG2E):#x}\ns_mov_b32 s19, s18\nv_mov_b32 v34, {f2u(1e-6):#x}\nv_mov_b32 v35, 0")
    a("s_setpc_b64 s[100:101]")
    return a.text()

def gen(**o):
    ks = [("ln_kernel", v1.gen_ln(o), 256, 0, 64, 64), ("mega_kernel", gen_mega(o), 256, 163840, 512, 256)]
    s = header([(k, 256, b, l) for k, _, b, l, _, _ in ks])
    for k, t, *_ in ks: s += kernel_begin(k) + t
    s += RODATA
    for k, _, _, _, v, ac in ks: s += ".p2align 6\n" + descriptor(k, v, ac)
    return s

if __name__ == "__main__":
    import sys
    ref = open("recurrent_scan__linear_attn_block__geglu_ffn__prompt.s.ref").read().split("\n")
    open(sys.argv[1], "w").write("\n".join(ref[:11]) + "\n" + gen())
```

```python
from asmlib import *
import math, struct
def f2u(x): return struct.unpack("<I", struct.pack("<f", x))[0]
LOG2E = 1.4426950408889634
GC0 = -2.0 * math.sqrt(2.0 / math.pi) * LOG2E
GC1 = GC0 * 0.044715
XN_OFF = 0
A2_OFF = 4 << 20
FP_OFF = 23 << 20
KVA_OFF = 31 << 20
LNF = KVA_OFF + 0x40000
KVF = LNF + 0x2000
HF = KVF + 0x4000
FPF = HF + 0x8000
WS_BYTES = 32 << 20
TS_OFF = 200 << 20
HASLN = 0
SPIN = 0x40000

class VMQ:
    def __init__(self): self.q = []
    def op(self, tag, n=1): self.q += [tag] * n
    def required(self, tag):
        idx = [i for i, t in enumerate(self.q) if t == tag]
        return None if not idx else len(self.q) - 1 - idx[-1]
    def wait(self, n):
        if len(self.q) > n: self.q = self.q[len(self.q) - n:]
    def need(self, tag):
        n = self.required(tag)
        assert n is not None and n < 64, (tag, n)
        self.wait(n); return n
class VM2:
    def __init__(self, kv, q): self.v = {"KV": kv, "Q": q}
    def op(self, tag, n=1, typ=None):
        for k, v in self.v.items():
            if typ in (None, k): v.op(tag, n)
    def need(self, *tags):
        r = [v.required(t) for v in self.v.values() for t in tags]
        r = [x for x in r if x is not None]
        n = min(r) if r else 63
        assert n < 64
        for v in self.v.values(): v.wait(n)
        return n
    def done(self, tag): return all(tag not in v.q for v in self.v.values())

def sched(mf, items, tail=(), strict=True):
    order = {"s": 0, "d": 1, "V": 2, "v": 3}
    gaps = [[] for _ in mf]
    for p, k, t in items: gaps[p].append((k, t))
    out = []
    for g, m in enumerate(mf):
        out.append(m)
        its = sorted(gaps[g], key=lambda x: order[x[0]])
        ns = sum(k == "s" for k, _ in its); nv = len(its) - ns
        if strict: assert nv + max(ns - 1, 0) <= 2 and sum(k == "d" for k, _ in its) <= 1 and sum(k == "V" for k, _ in its) <= 1, (g, its)
        out += [t for _, t in its]
    return out + list(tail)

def gen_mega(o):
    a = Asm()
    TS = o.get("ts", 0)
    LAG1, LAG2 = o.get("lag1", 2), o.get("lag2", 2)
    names = []
    def stamp(name, wait=True, dup=False):
        if not TS: return
        if not dup: names.append(name)
        if name == "start":
            a("s_mov_b32 s88, 0\ns_memrealtime s[84:85]\ns_memtime s[86:87]"); return
        if wait: a("s_waitcnt lgkmcnt(0)")
        a("s_mov_b32 m0, s88\ns_add_u32 s88, s88, 1\nv_writelane_b32 v0, s84, m0\nv_writelane_b32 v23, s86, m0\ns_memrealtime s[84:85]\ns_memtime s[86:87]")
    global NAMES
    NAMES = names
    pr = lambda r: f"v[{r}:{r+1}]"
    q4 = lambda k, r: f"{k}[{r}:{r+3}]"
    ool = []
    def setflag(val, soff):
        a(f"v_add_u32 v6, {val}, v43\ns_mov_b64 exec, 1\nbuffer_store_dword v6, v35, s[28:31], {soff} offen sc1\ns_mov_b64 exec, -1")
    def notready(val, thr):
        if isinstance(thr, int): return f"v_sub_u32 {val}, {val}, v43\nv_subrev_u32 {val}, {thr}, {val}\nv_cmp_lt_u32 vcc, {3-thr}, {val}"
        return f"v_sub_u32 {val}, {val}, v43\nv_cmp_gt_u32 vcc, 4, {val}\ns_nop 1\nv_cndmask_b32 {val}, 0, {val}, vcc\nv_cmp_gt_u32 vcc, {thr}, {val}"
    def spin(name, load, cmp):
        a(f"s_mov_b32 s3, 0\n{name}:\n{load}\ns_waitcnt vmcnt(0)\n{cmp}\ns_add_u32 s3, s3, 1\ns_cbranch_vccz {name}_ok")
        a(f"s_sleep 1\ns_cmp_lt_u32 s3, {SPIN}\ns_cbranch_scc1 {name}\n{name}_ok:")
    def check(name, load, cmp):
        a(f"{cmp}\ns_nop 0\ns_cbranch_vccnz {name}_slow\n{name}_back:")
        def blk():
            a(f"{name}_slow:"); spin(name, load, cmp); a(f"s_branch {name}_back")
        ool.append(blk)
    a("s_cmp_ge_u32 s2, 256\ns_cbranch_scc1 L_end")
    stamp("start")
    a("s_load_dwordx16 s[4:19], s[0:1], 0\ns_load_dwordx4 s[92:95], s[0:1], 64\ns_memrealtime s[80:81]")
    a("s_getpc_b64 s[90:91]\nL_base:\ns_lshr_b32 s82, s2, 3\ns_lshl_b32 s82, s82, 11\nv_lshrrev_b32 v41, 4, v0\nv_lshl_add_u32 v41, v41, 7, s82\nv_min_u32 v41, L_pcref-L_base, v41")
    if o.get("touch0", 1): a("global_load_dword v31, v41, s[90:91]")
    a("v_and_b32 v2, 63, v0\nv_lshrrev_b32 v1, 6, v0\nv_lshlrev_b32 v4, 4, v2\nv_readfirstlane_b32 s20, v1")
    a("s_and_b32 s3, s2, 7\ns_lshr_b32 s82, s2, 3")
    a("s_and_b32 s83, s82, 3\ns_lshl_b32 s23, s3, 2\ns_add_u32 s23, s23, s83\ns_lshr_b32 s24, s82, 2")
    a("s_and_b32 s75, s3, 1")
    a("s_bfe_u32 s74, s3, 0x10001\ns_lshl_b32 s74, s74, 2\ns_add_u32 s74, s74, s83")
    a("s_lshr_b32 s73, s3, 2\ns_lshl_b32 s73, s73, 3\ns_add_u32 s73, s73, s24")
    a("s_add_u32 s72, s83, s24")
    a("s_lshl_b32 s82, s24, 8\ns_lshl_b32 s83, s23, 3\ns_add_u32 s82, s82, s83\ns_lshl_b32 s83, s20, 1\ns_add_u32 s82, s82, s83")
    a("v_bfe_u32 v42, v2, 2, 1\nv_add_u32 v5, s82, v42\nv_lshlrev_b32 v5, 11, v5\nv_lshrrev_b32 v46, 3, v2\nv_lshl_add_u32 v5, v46, 6, v5\nv_and_b32 v44, 3, v2\nv_lshl_add_u32 v45, v44, 4, v5")
    a("v_mov_b32 v35, 0\ns_waitcnt lgkmcnt(0)")
    srd(a, 56, "s4", "s5", 4 << 20)
    for i in range(4): a(f"buffer_load_dwordx4 v[{48+4*i}:{51+4*i}], v45, s[56:59], 0 offen offset:{512*i}")
    srd(a, 96, "s92", "s93", 256)
    srd(a, 28, "s94", "s95", WS_BYTES)
    a("s_or_b32 s3, s2, s20\ns_cmp_eq_u32 s3, 0\ns_cbranch_scc0 L_notag")
    a("s_and_b32 s3, s80, -4\ns_or_b32 s3, s3, 1\nv_mov_b32 v6, s3\ns_mov_b64 exec, 1\nbuffer_store_dword v6, v35, s[96:99], 0 offen sc1\ns_mov_b64 exec, -1\nL_notag:")
    a("s_lshr_b32 s25, s23, 1\ns_and_b32 s26, s23, 1\ns_and_b32 s3, s25, 1")
    a("s_lshr_b32 s21, s20, 1\ns_and_b32 s22, s20, 1\ns_lshl_b32 s27, s25, 1\ns_add_u32 s27, s27, s22")
    a("s_mul_i32 s82, s25, 448\ns_cmp_eq_u32 s3, 1\ns_cselect_b32 s76, 320, 0\ns_cselect_b32 s77, 0xc0, 0\ns_cselect_b32 s83, 64, 0x100\ns_cselect_b32 s69, 0, 0x180")
    a("s_cselect_b32 s70, 0, 0x80\ns_add_u32 s77, s77, s70")
    a("s_cmp_eq_u32 s26, 1\ns_cselect_b32 s76, s76, s83\ns_cselect_b32 s77, s77, s69\ns_add_u32 s76, s76, s82\ns_add_u32 s77, s77, s82")
    def order_table(dst, lag, segs, rots):
        a(f"v_subrev_u32 v5, s72, v2\nv_add_u32 v5, {lag}, v5\nv_and_b32 v5, 3, v5")
        a(f"v_cmp_ge_u32 vcc, {lag}, v5\nv_mov_b32 v36, -1\nv_mov_b32 v37, {lag}\nv_cndmask_b32 v6, 0, v36, vcc")
        a(f"v_cmp_eq_u32 vcc, 0, v5\nv_sub_u32 v5, v2, v5\nv_mov_b32 v36, 0\nv_cndmask_b32 v6, v6, v37, vcc")
        for s, e in segs:
            a(f"v_subrev_u32 v37, {s}, v5\nv_cmp_gt_u32 vcc, {e - s - lag}, v37\ns_nop 1\nv_cndmask_b32 v36, v36, v6, vcc")
        a(f"v_add_u32 v{dst}, v2, v36")
        if rots:
            a("v_add_u32 v5, s72, v2\nv_and_b32 v5, 3, v5\nv_and_b32 v6, 60, v2\nv_or_b32 v5, v5, v6")
            for s in rots:
                a(f"v_cmp_eq_u32 vcc, {s}, v6\ns_nop 1\nv_cndmask_b32 v{dst}, v{dst}, v5, vcc")
    order_table(16, LAG1, [(4, 32)], [0])
    a("s_lshl_b32 s82, s24, 19\ns_lshl_b32 s65, s20, 12\ns_add_u32 s82, s82, s65\nv_add_u32 v3, s82, v4")
    a("v_lshrrev_b32 v36, 3, v2\ns_lshl_b32 s82, s20, 3\nv_add_u32 v36, s82, v36")
    a("v_bfe_u32 v5, v2, 4, 1\ns_lshl_b32 s82, s22, 1\nv_or_b32 v5, s82, v5\nv_lshlrev_b32 v5, 1, v5\nv_and_b32 v6, 7, v2\nv_xor_b32 v5, v5, v6\nv_lshlrev_b32 v5, 4, v5")
    a("s_lshl_b32 s82, s25, 7\ns_cmp_eq_u32 s26, 0\ns_cselect_b32 s83, 2048, 0\ns_add_u32 s82, s82, s83")
    a("v_mul_u32_u24 v7, 6144, v36\nv_add_u32 v7, v7, v5\nv_add_u32 v7, s82, v7")
    a("v_mul_u32_u24 v8, 7168, v36\nv_add_u32 v9, v8, v5\nv_add_u32 v8, s76, v9\nv_add_u32 v9, s77, v9")
    a("s_lshl_b32 s64, s20, 10\ns_add_u32 s64, s64, 0x10000")
    srd(a, 32, "s6", "s7", 6144 * 1024)
    srd(a, 36, "s12", "s13", 7168 * 1024)
    srd(a, 40, "s14", "s15", 7168 * 1024)
    a("s_cmp_eq_u32 s21, 0\ns_cselect_b32 s44, s12, s14\ns_cselect_b32 s45, s13, s15\ns_and_b32 s45, s45, 0xffff")
    a(f"s_mov_b32 s46, {7168*1024}\ns_mov_b32 s47, 0x20000")
    for r in range(144, 256): a(f"v_accvgpr_write_b32 a{r}, 0")
    for r in range(112, 256, 2): a(f"v_pk_mul_f32 {pr(r)}, 0, 0")
    a("s_lshl_b32 s82, s24, 19\ns_lshr_b32 s83, s23, 1\ns_lshl_b32 s83, s83, 10\ns_add_u32 s82, s82, s83")
    a("s_lshl_b32 s83, s26, 3\ns_lshl_b32 s3, s20, 1\ns_add_u32 s83, s83, s3\ns_lshl_b32 s83, s83, 6\ns_add_u32 s82, s82, s83\ns_lshl_b32 s83, s26, 1")
    a("v_lshlrev_b32 v45, 14, v46\nv_lshl_add_u32 v45, v42, 6, v45\nv_xor_b32 v44, s83, v44\nv_lshl_add_u32 v45, v44, 4, v45\nv_add_u32 v45, s82, v45")
    a("s_cmp_eq_u32 s26, 1\ns_cbranch_scc1 L_typeQ\ns_branch L_typeKV")

    a("L_ln:")
    a("s_waitcnt vmcnt(5)")
    U = 64
    for k in range(16): a(f"v_lshlrev_b32 v{U+2*k}, 16, v{48+k}\nv_and_b32 v{U+1+2*k}, 0xffff0000, v{48+k}")
    def reduce(r):
        for dpp in ["quad_perm:[1,0,3,2]", "quad_perm:[2,3,0,1]", "row_ror:8"]:
            a(f"s_nop 1\nv_add_f32_dpp v{r}, v{r}, v{r} {dpp} row_mask:0xf bank_mask:0xf")
        for sw in (16, 32): a(f"v_mov_b32 v104, v{r}\ns_nop 1\nv_permlane{sw}_swap_b32 v104, v{r}\ns_nop 1\nv_add_f32 v{r}, v{r}, v104")
    a(f"v_pk_add_f32 v[96:97], {pr(U)}, {pr(U+2)}\nv_pk_add_f32 v[98:99], {pr(U+4)}, {pr(U+6)}")
    for k in range(4, 16): a(f"v_pk_add_f32 {pr(96+2*(k&1))}, {pr(96+2*(k&1))}, {pr(U+2*k)}")
    a("v_pk_add_f32 v[96:97], v[96:97], v[98:99]\nv_add_f32 v96, v96, v97")
    reduce(96)
    a(f"v_mul_f32 v96, {f2u(1/1024):#x}, v96")
    NEG = "op_sel_hi:[1,0] neg_lo:[0,1] neg_hi:[0,1]"
    for k in range(16):
        t = 100 + 2 * (k & 1)
        a(f"v_pk_add_f32 {pr(t)}, {pr(U+2*k)}, v[96:97] {NEG}")
        if k: a(f"v_pk_fma_f32 v[98:99], {pr(202-t)}, {pr(202-t)}, " + ("v[98:99]" if k > 1 else "0"))
    a("v_pk_fma_f32 v[98:99], v[102:103], v[102:103], v[98:99]\nv_add_f32 v98, v98, v99")
    reduce(98)
    a(f"v_mul_f32 v98, {f2u(1/1024):#x}, v98")
    def rnd(r): a(f"v_cvt_pk_bf16_f32 v{r}, v{r}, v{r}\nv_lshlrev_b32 v{r}, 16, v{r}")
    rnd(96); rnd(98)
    a(f"v_add_f32 v98, {f2u(1e-5):#x}, v98"); rnd(98)
    a("v_sqrt_f32 v98, v98\ns_nop 0"); rnd(98)
    a("v_rcp_f32 v98, v98")
    for i in range(4):
        K = range(4*i, 4*i+4)
        for k in K: a(f"v_pk_add_f32 {pr(U+2*k)}, {pr(U+2*k)}, v[96:97] {NEG}")
        for k in K: a(f"v_cvt_pk_bf16_f32 v{48+k}, v{U+2*k}, v{U+2*k+1}")
        for k in K: a(f"v_lshlrev_b32 v{U+2*k}, 16, v{48+k}\nv_and_b32 v{U+1+2*k}, 0xffff0000, v{48+k}")
        for k in K: a(f"v_pk_mul_f32 {pr(U+2*k)}, {pr(U+2*k)}, v[98:99] op_sel_hi:[1,0]")
        for k in K: a(f"v_cvt_pk_bf16_f32 v{48+k}, v{U+2*k}, v{U+2*k+1}")
        a(f"s_mov_b32 s3, {i*131072}\nbuffer_store_dwordx4 v[{48+4*i}:{51+4*i}], v45, s[28:31], s3 offen sc1")
    TAGLOAD = "buffer_load_dword v43, v35, s[96:99], 0 offen sc1"
    a(TAGLOAD)
    a("s_setpc_b64 s[100:101]")
    a("L_setup:")
    srd(a, 48, "s16", "s17", 3584 * 2048)
    srd(a, 52, "s8", "s9", 1024 * 2048)
    srd(a, 60, "s18", "s19", 4 << 20)
    for r in range(48, 112, 2): a(f"v_pk_mul_f32 {pr(r)}, 0, 0")
    a("v_lshrrev_b32 v36, 4, v2\nv_bfe_u32 v5, v2, 3, 1\nv_lshlrev_b32 v5, 1, v5\nv_xor_b32 v5, v5, v36\nv_and_b32 v6, 15, v2\nv_lshlrev_b32 v6, 6, v6\nv_lshl_add_u32 v10, v5, 4, v6")
    a("s_lshl_b32 s82, s21, 13\nv_add_u32 v10, s82, v10")
    a("v_bfe_u32 v5, v2, 2, 2\nv_lshl_add_u32 v6, v36, 3, v5")
    a("v_bfe_u32 v5, v2, 3, 2")
    a("s_lshl_b32 s82, s22, 1\nv_xor_b32 v5, s82, v5\nv_lshlrev_b32 v5, 5, v5\nv_lshl_add_u32 v11, v6, 7, v5")
    a("v_and_b32 v5, 3, v2\nv_lshl_add_u32 v11, v5, 3, v11\nv_add_u32 v11, 0x10000, v11")
    a("v_xor_b32 v12, 32, v11")
    a("v_and_b32 v36, 1, v36\nv_xor_b32 v36, s22, v36\nv_lshlrev_b32 v36, 5, v36\nv_lshl_add_u32 v13, v6, 6, v36\nv_lshl_add_u32 v13, v5, 3, v13\nv_add_u32 v13, 0x10000, v13")
    a("v_add_u32 v14, 40960, v11\nv_add_u32 v15, 40960, v12\nv_add_u32 v1, 40960, v13")
    a(f"s_lshl_b32 s83, s24, 10\ns_add_u32 s83, s83, {LNF}\ns_lshl_b32 s82, s23, 5\ns_add_u32 s82, s82, s83")
    a("v_and_b32 v46, 31, v2\nv_lshl_add_u32 v46, v46, 5, s83")
    stamp("setup1")
    a("s_waitcnt vmcnt(10)")
    check("L_tag", TAGLOAD, "v_cmp_eq_u32 vcc, 0, v43")
    a("v_and_b32 v43, -4, v43\ns_barrier")
    a("s_cmp_eq_u32 s20, 0\ns_cbranch_scc0 L_ls1")
    setflag(1, "s82")
    a("L_ls1:")
    stamp("lnack")
    order_table(17, LAG2, o.get("segs2", [(4, 16), (16, 28), (28, 44)]), o.get("rots2", [0]))
    a("v_subrev_u32 v42, 24, v17")
    a("v_lshrrev_b32 v5, 2, v17\nv_lshlrev_b32 v6, 1, v17\nv_sub_u32 v5, v6, v5")
    a("v_subrev_u32 v36, 16, v17\nv_lshrrev_b32 v37, 1, v36\nv_mad_u32_u24 v37, v37, 7, 1\nv_and_b32 v36, 1, v36\nv_lshl_add_u32 v37, v36, 2, v37")
    a("v_cmp_le_u32 vcc, 16, v17\nv_mad_u32_u24 v36, v42, 7, 3\ns_nop 0\nv_cndmask_b32 v5, v5, v37, vcc")
    a("v_cmp_le_u32 vcc, 24, v17\ns_mul_i32 s82, s75, 28\ns_nop 0\nv_cndmask_b32 v5, v5, v36, vcc\nv_add_u32 v5, s82, v5")
    a("v_cmp_le_u32 vcc, 28, v17\nv_subrev_u32 v36, 28, v17\ns_nop 0\nv_cndmask_b32 v17, v5, v36, vcc")
    a("v_cmp_gt_u32 vcc, 4, v42\nv_lshlrev_b32 v45, 17, v17\nv_lshlrev_b32 v17, 14, v17\ns_lshl_b32 s82, s22, 14\nv_mov_b32 v5, s82\nv_mov_b32 v6, 0x4000")
    a("v_cndmask_b32 v5, 0, v5, vcc\nv_cndmask_b32 v6, 0, v6, vcc\nv_sub_u32 v45, v45, v5\nv_add_u32 v44, 0x4000, v45\nv_add_u32 v44, v44, v6")
    a(f"s_lshl_b32 s82, s73, 11\ns_add_u32 s82, s82, {HF}\ns_lshl_b32 s83, s75, 10\ns_add_u32 s83, s83, s82\nv_lshrrev_b32 v5, 1, v2\nv_lshl_add_u32 v19, v5, 5, s83")
    a("v_lshrrev_b32 v6, 2, v2\nv_lshlrev_b32 v6, 7, v6\nv_and_b32 v5, 1, v5\nv_lshl_add_u32 v6, v5, 5, v6\ns_add_u32 s82, s82, 64\nv_add_u32 v18, s82, v6")
    a(f"s_lshl_b32 s78, s24, 1\ns_add_u32 s78, s78, s21\ns_lshl_b32 s79, s78, 6\ns_lshl_b32 s82, s23, 1\ns_add_u32 s79, s79, s82\ns_add_u32 s79, s79, s22\ns_lshl_b32 s79, s79, 5\ns_add_u32 s79, s79, {HF}")
    a(f"s_mul_i32 s78, s78, {144*8192}\ns_add_u32 s78, s78, {A2_OFF + 32*8192}")
    a("s_lshl_b32 s14, s73, 3\ns_add_u32 s14, s14, s74\ns_lshl_b32 s14, s14, 1\ns_add_u32 s14, s14, s75\ns_lshl_b32 s14, s14, 2\ns_add_u32 s14, s14, s20")
    a(f"s_mul_i32 s82, s73, {144*8192}\ns_add_u32 s82, s82, s65\ns_add_u32 s82, s82, {A2_OFF}\ns_add_u32 s83, s82, {32*8192}\nv_add_u32 v20, s83, v4")
    a("s_lshl_b32 s3, s75, 11\ns_add_u32 s83, s82, s3\nv_add_u32 v21, s83, v4\ns_add_u32 s66, s65, s3")
    a("v_lshrrev_b32 v5, 3, v2\ns_lshl_b32 s82, s20, 4\nv_add_u32 v5, s82, v5\nv_lshlrev_b32 v5, 11, v5")
    a("v_lshrrev_b32 v6, 4, v2\nv_lshlrev_b32 v6, 1, v6\nv_and_b32 v36, 7, v2\nv_xor_b32 v6, v6, v36\nv_lshl_add_u32 v5, v6, 4, v5")
    a("s_lshl_b32 s82, s74, 8\nv_add_u32 v22, s82, v5")
    a("s_lshl_b32 s67, s20, 11\ns_add_u32 s67, s67, 0x10000")
    a("s_lshl_b32 s82, s21, 12\ns_add_u32 s82, s82, s3\nv_add_u32 v24, s82, v4\nv_xor_b32 v25, 2048, v24")
    a("v_lshrrev_b32 v5, 2, v2\nv_lshlrev_b32 v5, 7, v5\nv_and_b32 v6, 3, v2\nv_lshl_add_u32 v5, v6, 3, v5")
    a("v_bfe_u32 v6, v2, 3, 2\nv_lshl_add_u32 v5, v6, 5, v5\ns_lshl_b32 s82, s22, 13\ns_add_u32 s82, s82, 0x10000\nv_add_u32 v26, s82, v5")
    a("v_xor_b32 v27, 32, v26\nv_xor_b32 v28, 64, v26\nv_xor_b32 v29, 96, v26")
    a("s_lshl_b32 s82, s73, 7\ns_lshl_b32 s83, s21, 6\ns_add_u32 s82, s82, s83\ns_lshl_b32 s83, s75, 5\ns_add_u32 s82, s82, s83")
    a("v_and_b32 v5, 15, v2\nv_add_u32 v5, s82, v5\nv_lshlrev_b32 v5, 11, v5\nv_bfe_u32 v6, v2, 4, 1\nv_lshl_add_u32 v5, v6, 5, v5\nv_lshrrev_b32 v6, 5, v2\nv_lshl_add_u32 v5, v6, 4, v5")
    a("s_lshl_b32 s82, s74, 8\ns_lshl_b32 s83, s22, 7\ns_add_u32 s82, s82, s83\nv_add_u32 v30, s82, v5")
    a("s_lshr_b32 s82, s2, 3\ns_lshl_b32 s82, s82, 2\ns_add_u32 s82, s82, s20\ns_lshr_b32 s83, s74, 2\ns_lshl_b32 s83, s83, 10")
    a("v_lshrrev_b32 v5, 3, v2\nv_and_b32 v6, 7, v2\nv_lshlrev_b32 v6, 7, v6\nv_lshl_add_u32 v5, v5, 11, v6\nv_add_u32 v5, s83, v5")
    a("s_lshl_b32 s83, s82, 14")
    a(f"s_mul_i32 s3, s75, {1792*2048}\ns_add_u32 s83, s83, s3\nv_add_u32 v38, s83, v5")
    a(f"s_min_u32 s82, s82, 95\ns_lshl_b32 s83, s82, 14\ns_add_u32 s83, s83, s3\ns_add_u32 s83, s83, {1024*2048}\nv_add_u32 v39, s83, v5")
    a("s_lshl_b32 s82, s2, 2\ns_add_u32 s82, s82, s20\ns_lshl_b32 s83, s82, 10\nv_lshrrev_b32 v5, 3, v2\nv_lshl_add_u32 v42, v5, 7, s83")
    a("s_lshl_b32 s83, s82, 11\nv_lshrrev_b32 v5, 2, v2\nv_lshl_add_u32 v40, v5, 7, s83\ns_mov_b32 s89, 0")
    a(f"s_mov_b32 s80, {f2u(GC1):#x}\ns_mov_b32 s81, s80\nv_mov_b32 v32, {f2u(GC0):#x}\nv_mov_b32 v33, v32")
    a(f"s_mov_b32 s18, {f2u(LOG2E):#x}\ns_mov_b32 s19, s18\nv_mov_b32 v34, {f2u(1e-6):#x}")
    stamp("setup2")
    a("s_cmp_eq_u32 s20, 1\ns_cbranch_scc0 L_spinL_ok")
    spin("L_spinL", "buffer_load_dword v47, v46, s[28:31], 0 offen sc1", notready("v47", 1))
    a("s_barrier\ns_setpc_b64 s[100:101]")

    A0, A1, B0, B1 = 0, 32, 64, 104
    def accn(i, j):
        if j < 2: return ("a", 144 + (j * 8 + i) * 4)
        if j < 8: return ("v", 48 + ((j - 2) * 8 + i) * 4)
        if i < 2: return ("v", 240 + ((j - 8) * 2 + i) * 4)
        return ("a", 208 + ((j - 8) * 6 + i - 2) * 4)
    acc = lambda i, j: q4(*accn(i, j))
    def kcalc1():
        return ["v_readlane_b32 s69, v16, s68", f"s_mul_i32 s70, s69, {32*6144}", f"s_mul_i32 s71, s69, {32*7168}", "s_lshl_b32 s69, s69, 14", "s_add_u32 s68, s68, 1"]
    def dmas1(typ, st):
        out = [(f"s_add_u32 m0, s65, {st*16384}" if p == 0 else None, f"buffer_load_dwordx4 v3, s[28:31], s69 offen offset:{p*1024} sc1 lds") for p in range(4)]
        if typ == "Q": sl = [(32, 7, 70, 0), (36, 8, 71, 0), (40, 8, 71, 0), (36, 9, 71, 0), (40, 9, 71, 0)]
        else:          sl = [(32, 7, 70, 0), (36, 8, 71, 0), (40, 8, 71, 0), (32, 7, 70, 2048), (44, 9, 71, 0)]
        for p, (sr, vo, so, imm) in enumerate(sl):
            out.append((f"s_add_u32 m0, s64, {st*20480 + p*4096 - imm}", f"buffer_load_dwordx4 v{vo}, s[{sr}:{sr+3}], s{so} offen offset:{imm} lds"))
        return out
    def issue1(typ, st, part):
        a(f"v_readlane_b32 s69, v16, {st}\ns_nop 0")
        ds = dmas1(typ, st)
        if part == "A": a("s_lshl_b32 s69, s69, 14\ns_nop 1"); ds = ds[:4]
        else: a(f"s_mul_i32 s70, s69, {32*6144}\ns_mul_i32 s71, s69, {32*7168}"); ds = ds[4:]
        for m, d in ds:
            if m: a(m); a("s_nop 0")
            a(d)
    def reads1(typ, st):
        A = A1 if st & 1 else A0; B = B1 if st & 1 else B0
        out = [f"ds_read_b128 a[{A+4*i}:{A+4*i+3}], v10 offset:{st*16384 + i*1024}" for i in range(8)]
        va = (11, 12, 13) if st < 2 else (14, 15, 1)
        for j in range(10):
            p, cbi = j >> 1, j & 1
            base = (st & 1) * 20480 + p * 4096
            if typ == "KV" and p == 4: v, o0, o1 = va[2], base + cbi * 2048, base + cbi * 2048 + 256
            else: v, o0, o1 = va[cbi], base, base + 512
            out.append(f"ds_read_b64_tr_b16 a[{B+4*j}:{B+4*j+1}], v{v} offset:{o0}")
            out.append(f"ds_read_b64_tr_b16 a[{B+4*j+2}:{B+4*j+3}], v{v} offset:{o1}")
        return out
    def mfmas1(typ, st, jorder=range(10)):
        A = A1 if st & 1 else A0; B = B1 if st & 1 else B0
        out = []
        for n, j in enumerate(jorder):
            nt = (typ == "KV" and (j >> 1) in (0, 3))
            ii = list(range(8))
            if n & 1: ii.reverse()
            for i in ii:
                x = q4("a", A + 4 * i); w = q4("a", B + 4 * j)
                op = (x, w) if nt else (w, x)
                out.append(f"v_mfma_f32_16x16x32_bf16 {acc(i,j)}, {op[0]}, {op[1]}, {acc(i,j)}")
        return out
    def step1(typ, st, dma, rd, tail, extra=(), jorder=range(10)):
        it = list(extra)
        if rd:
            for k, r in enumerate(reads1(typ, (st + 1) & 3)): it.append((int(1 + k * o.get("ds1", 2.5)), "d", r))
        if dma:
            kc = kcalc1()
            it.append((0, "v", kc[0]))
            for k in range(1, 5): it.append((k, "s", kc[k]))
            for k, (m, d) in enumerate(dmas1(typ, st)):
                pos = int(o.get("dma1s", 6) + k * o.get("dma1", 8))
                if m: it.append((pos - 1, "s", m))
                it.append((pos, "V", d))
        for l in sched(mfmas1(typ, st, jorder), it, tail): a(l)

    FA, FB = [0, 32], [64, 96]
    accF = lambda i, cb: q4("a", 128 + 16 * i + 4 * cb)
    accS = lambda i, cb: q4("v", 48 + 16 * i + 4 * cb)
    PQ, XR, PART = 80, 240, 128
    def kcalc2(t):
        return [f"v_readlane_b32 s69, v17, {t}", f"v_readlane_b32 s70, v45, {t}", f"v_readlane_b32 s71, v44, {t}"]
    def dmas2A(ph, st):
        va, ma, na = (20, 65, 4) if ph == "F" else (21, 66, 2)
        return [(f"s_add_u32 m0, s{ma}, {st*16384}" if p == 0 else None, f"buffer_load_dwordx4 v{va}, s[28:31], s69 offen offset:{p*1024} sc1 lds") for p in range(na)]
    def dmas2B(ph, st):
        sb = 48 if ph == "F" else 52
        return [(f"s_add_u32 m0, s67, {st*16384 + pn*8192 + rh*1024 - pn*128}", f"buffer_load_dwordx4 v22, s[{sb}:{sb+3}], s{71 if rh else 70} offen offset:{pn*128} lds")
                for rh in range(2) for pn in range(2)]
    def issue2A(t):
        a(f"v_readlane_b32 s69, v17, {t}\ns_nop 2")
        for m, d in dmas2A("F", t):
            if m: a(m); a("s_nop 0")
            a(d)
    def reads2(ph, st):
        A = FA[st & 1]; B = FB[st & 1]; out = []
        for kk in range(2):
            for i in range(4 if ph == "F" else 2):
                out.append(f"ds_read_b128 a[{A+16*kk+4*i}:{A+16*kk+4*i+3}], v{24 if i < 2 else 25} offset:{st*16384 + kk*8192 + (i&1)*1024}")
            for cb in range(4):
                for n in range(2):
                    r = B + 16*kk + 4*cb + 2*n
                    out.append(f"ds_read_b64_tr_b16 a[{r}:{r+1}], v{26+cb} offset:{st*16384 + kk*4096 + n*2048}")
        return out
    def mfmas2(ph, st, first):
        A = FA[st & 1]; B = FB[st & 1]; out = []
        for kk in range(2):
            for i in ([2, 3, 0, 1] if ph == "F" else [0, 1]):
                cbs = list(range(4))
                if i & 1: cbs.reverse()
                for cb in cbs:
                    c = accF(i, cb) if ph == "F" else accS(i, cb)
                    out.append(f"v_mfma_f32_16x16x32_bf16 {c}, {q4('a', B+16*kk+4*cb)}, {q4('a', A+16*kk+4*i)}, {0 if first and kk == 0 else c}")
        return out
    PH = lambda t: None if t >= 44 else ("F" if t < 28 else "S")
    def step2(t, tail, extra=()):
        ph, dph, rph, st = PH(t), PH(t + 4), PH(t + 1), t & 3
        mf = mfmas2(ph, st, t in (0, 28)); n = len(mf); it = list(extra)
        if rph:
            rs = reads2(rph, (st + 1) & 3)
            lim = n - (7 if ph == "F" else 3)
            for k, r in enumerate(rs): it.append((1 + int(k * (lim - 1) / len(rs)) if ph == "F" else int(k * lim / len(rs)), "d", r))
        if dph:
            kc = kcalc2(t + 4)
            it += [(0, "v", kc[0]), (0, "v", kc[1]), (1, "v", kc[2])]
            pos0, stride = (o.get("f0", 6), o.get("fs", 3.4)) if ph == "F" else (4, 2)
            for k, (m, d) in enumerate(dmas2A(dph, st) + dmas2B(dph, st)):
                pos = int(pos0 + k * stride)
                if m: it.append((pos - 1, "s", m))
                it.append((pos, "V", d))
        for l in sched(mf, it, tail, strict=(ph == "F")): a(l)

    def fetch(i, j, dst):
        k, r = accn(i, j)
        if k == "v": return r
        for e in range(4): a(f"v_accvgpr_read_b32 v{dst+e}, a{r+e}")
        return dst
    TG = [8, 12]
    def gelu(pairs, cgrp, out):
        cgrp = list(cgrp); gs, us = [], []
        for (i, jg, ju) in pairs:
            gs.append(fetch(i, jg, cgrp.pop() if accn(i, jg)[0] == "a" else None))
            us.append(fetch(i, ju, cgrp.pop() if accn(i, ju)[0] == "a" else None))
        H = [(n, h) for n in range(len(pairs)) for h in (0, 2)]; ts = TG
        for n, h in H: a(f"v_pk_mul_f32 {pr(ts[n]+h)}, {pr(gs[n]+h)}, {pr(gs[n]+h)}")
        for n, h in H: a(f"v_pk_fma_f32 {pr(ts[n]+h)}, {pr(ts[n]+h)}, s[80:81], v[32:33]")
        for n, h in H: a(f"v_pk_mul_f32 {pr(ts[n]+h)}, {pr(ts[n]+h)}, {pr(gs[n]+h)}")
        for n in range(len(pairs)):
            for e in range(4): a(f"v_exp_f32 v{ts[n]+e}, v{ts[n]+e}")
        for n, h in H: a(f"v_pk_mul_f32 {pr(us[n]+h)}, {pr(gs[n]+h)}, {pr(us[n]+h)}")
        for n, h in H: a(f"v_pk_add_f32 {pr(ts[n]+h)}, {pr(ts[n]+h)}, 1.0 op_sel_hi:[1,0]")
        for n in range(len(pairs)):
            for e in range(4): a(f"v_rcp_f32 v{ts[n]+e}, v{ts[n]+e}")
        for n, h in H: a(f"v_pk_mul_f32 {pr(ts[n]+h)}, {pr(ts[n]+h)}, {pr(us[n]+h)}")
        for n, h in H: a(f"v_cvt_pk_bf16_f32 v{out+2*n+h//2}, v{ts[n]+h}, v{ts[n]+h+1}")
    def phi(blocks, xg, out):
        xs = [fetch(i, j, xg[n]) for n, (i, j) in enumerate(blocks)]; tg = TG
        H = [(n, h) for n in range(len(blocks)) for h in (0, 2)]
        for n, h in H: a(f"v_pk_mul_f32 {pr(tg[n]+h)}, {pr(xs[n]+h)}, s[18:19]")
        for n in range(len(blocks)):
            for e in range(4): a(f"v_exp_f32_e64 v{tg[n]+e}, v{tg[n]+e} clamp")
        for n in range(len(blocks)):
            for e in range(4): a(f"v_max_f32 v{xs[n]+e}, v34, v{xs[n]+e}")
        for n, h in H: a(f"v_pk_add_f32 {pr(tg[n]+h)}, {pr(tg[n]+h)}, {pr(xs[n]+h)}")
        for n, h in H: a(f"v_cvt_pk_bf16_f32 v{out+2*n+h//2}, v{tg[n]+h}, v{tg[n]+h+1}")
    HLOAD = "buffer_load_dword v31, v19, s[28:31], 0 offen sc1"
    SLOAD = "buffer_load_dword v31, v18, s[28:31], 0 offen sc1"
    ZLOAD = "buffer_load_dword v47, v35, s[28:31], s17 offen sc1"
    vms = {}

    for typ in ["KV", "Q"]:
        a(f"L_type{typ}:")
        D = dict(dup=(typ == "Q"))
        def call(lbl): a(f"s_getpc_b64 s[100:101]\ns_add_u32 s100, s100, 12\ns_addc_u32 s101, s101, 0\ns_branch {lbl}")
        if typ == "KV":
            a("v_lshrrev_b32 v36, 2, v2\ns_lshl_b32 s82, s22, 4\nv_add_u32 v36, s82, v36")
            a("v_lshrrev_b32 v5, 5, v2\nv_lshlrev_b32 v5, 1, v5\nv_and_b32 v6, 3, v2\nv_xor_b32 v5, v5, v6\nv_lshlrev_b32 v5, 4, v5")
            a("v_mul_u32_u24 v9, 7168, v36\nv_add_u32 v9, v9, v5\nv_add_u32 v9, s77, v9")
            a("s_cmp_eq_u32 s24, 0\ns_cbranch_scc0 L_nozero")
            a(f"s_mul_i32 s82, s25, 12288\ns_mul_i32 s83, s20, 3072\ns_add_u32 s82, s82, s83\ns_add_u32 s82, s82, {KVA_OFF}")
            for k in range(3): a(f"buffer_store_dwordx4 v[112:115], v4, s[28:31], s82 offen offset:{k*1024} sc1")
            a("L_nozero:")
        if typ == "KV" and TS: names.insert(1, "pre"); names.insert(2, "ln")
        stamp("pre", dup=True)
        issue1(typ, 0, "B")
        call("L_ln")
        stamp("ln", dup=True)
        issue1(typ, 1, "B"); issue1(typ, 2, "B")
        call("L_setup")
        stamp("lnsync", **D)
        issue1(typ, 0, "A"); issue1(typ, 1, "A")
        a("s_waitcnt vmcnt(4)\ns_barrier")
        stamp("st0", **D)
        for r in reads1(typ, 0): a(r)
        issue1(typ, 2, "A"); issue1(typ, 3, "A"); issue1(typ, 3, "B")
        a("s_mov_b32 s72, 0\ns_mov_b32 s68, 4")
        a("s_waitcnt vmcnt(13) lgkmcnt(0)\ns_barrier")
        a(".p2align 6")
        a(f"L_loop1{typ}:")
        stamp("g1it0", False, **D)
        if typ == "KV": names.extend([f"g1it{n}" for n in range(1, 7)])
        MP = o.get("mpre", 1)
        W = lambda n: [f"s_waitcnt vmcnt({n}) lgkmcnt(0)", "s_barrier"]
        step1(typ, 0, True, True, W(18 + MP), extra=[(2, "V", "buffer_load_dword v31, v42, s[48:51], s89 offen"), (10, "s", "s_add_u32 s89, s89, 0x100000")] if MP else [])
        step1(typ, 1, True, True, W(18 + MP))
        step1(typ, 2, True, True, W(18))
        step1(typ, 3, True, True, W(18) + [f"s_cbranch_scc1 L_loop1{typ}"], extra=[(76, "s", "s_add_u32 s72, s72, 1"), (77, "s", "s_cmp_lt_u32 s72, 7")])
        stamp("g1it7", False, **D)
        vm = VMQ(); vm.op(30, 9); vm.op(31, 9)
        T = o.get("touch", 1)
        ex = []
        if typ == "KV":
            ex += [(0, "s", "s_lshl_b32 s17, s23, 5"), (1, "s", f"s_add_u32 s17, s17, {LNF}"), (2, "V", ZLOAD)]; vm.op("z")
        if T: ex += [(10, "V", "global_load_dword v31, v41, s[90:91]"), (14, "V", "buffer_load_dword v31, v40, s[52:55], 0 offen"),
                     (40, "V", "buffer_load_dword v31, v38, s[48:51], 0 offen")]; vm.op("touch", 3)
        step1(typ, 0, False, True, W(vm.need(30)), extra=ex)
        ex = []
        if T: ex = [(40, "V", "buffer_load_dword v31, v39, s[48:51], 0 offen")]; vm.op("touch")
        step1(typ, 1, False, True, W(vm.need(31)), extra=ex)
        step1(typ, 2, False, True, ["s_waitcnt lgkmcnt(0)", "s_barrier"])
        ex = []
        for t in range(4):
            kc = kcalc2(t); p0 = 20 * t
            ex += [(p0, "v", kc[1]), (p0, "v", kc[2])]
            for k, (m, d) in enumerate(dmas2B("F", t)):
                ex.append((p0 + 5 + 4 * k, "s", m)); ex.append((p0 + 6 + 4 * k, "V", d)); vm.op("B")
        step1(typ, 3, False, False, [], extra=ex, jorder=[2, 3, 4, 5, 0, 1, 6, 7, 8, 9])
        stamp("g1end", **D)
        def koff(dst, src, add):
            a(f"s_lshr_b32 s{dst}, s{src}, 6\ns_add_u32 s{dst}, s{dst}, {add}\ns_lshl_b32 s{dst}, s{dst}, 13\ns_add_u32 s{dst}, s{dst}, s78\ns_add_u32 s{dst+1}, s{dst}, 4096")
        def hstore(i, r, tag, va=4):
            a(f"buffer_store_dwordx4 {q4('v', r)}, v{va}, s[28:31], s{70 if i < 4 else 71} offen offset:{(i&3)*1024} sc1"); vm.op(tag)
        koff(70, 76, "s22")
        for i in range(8):
            gelu([(i, 2, 4), (i, 3, 5)], [], accn(i, 2)[1]); hstore(i, accn(i, 2)[1], "h1")
        stamp("ep1", **D)
        work = []
        if typ == "KV":
            KVA = [128 + 4 * b for b in range(6)]; ONES = 152; P = 156; XG = [160, 164]; CG = [160, 164, 168, 172]
            def packv():
                for eb in range(2):
                    for ip in range(4):
                        r0, r1 = accn(2*ip, 6+eb)[1], accn(2*ip+1, 6+eb)[1]
                        a(f"v_cvt_pk_bf16_f32 v{r0}, v{r0}, v{r0+1}\nv_cvt_pk_bf16_f32 v{r0+1}, v{r0+2}, v{r0+3}\nv_cvt_pk_bf16_f32 v{r0+2}, v{r1}, v{r1+1}\nv_cvt_pk_bf16_f32 v{r0+3}, v{r1+2}, v{r1+3}")
                for e in range(4): a(f"v_mov_b32 v{ONES+e}, 0x3f803f80")
            work.append(packv)
            def kvpart(ip, db):
                phi([(2*ip, db), (2*ip+1, db)], XG, P)
                a("s_nop 1")
                for eb in range(2):
                    d = q4("v", KVA[2*db+eb])
                    a(f"v_mfma_f32_16x16x32_bf16 {d}, {q4('v', P)}, {q4('v', accn(2*ip, 6+eb)[1])}, {d if ip else 0}")
                d = q4("v", KVA[4+db])
                a(f"v_mfma_f32_16x16x32_bf16 {d}, {q4('v', P)}, {q4('v', ONES)}, {d if ip else 0}")
            for ip in range(4):
                for db in range(2): work.append(lambda ip=ip, db=db: kvpart(ip, db))
            def narrow(i):
                O = 112 + 2*i
                gelu([(i, 8, 9), (i+1, 8, 9)], CG, O)
                a(f"s_nop 1\nv_permlane32_swap_b32 v{O}, v{O+2}\nv_permlane32_swap_b32 v{O+1}, v{O+3}")
            def kvlds():
                narrow(0)
                a(f"s_mul_i32 s82, s20, 6144\ns_add_u32 s82, s82, 0x20000\nv_add_u32 v5, s82, v4")
                for b in range(6): a(f"ds_write_b128 v5, {q4('v', KVA[b])} offset:{b*1024}")
                a(f"s_mul_i32 s82, s22, 6144\ns_mul_i32 s83, s21, 3072\ns_add_u32 s82, s82, s83\ns_add_u32 s82, s82, 0x20000\nv_lshl_add_u32 v5, v2, 2, s82")
                a(f"s_mul_i32 s16, s27, 6144\ns_add_u32 s16, s16, s83\ns_add_u32 s16, s16, {KVA_OFF}\nv_lshlrev_b32 v36, 2, v2")
                a("s_waitcnt lgkmcnt(0)\ns_barrier")
                for r in range(12): a(f"ds_read2st64_b32 {pr(80+2*r)}, v5 offset0:{r} offset1:{r+48}")
            work.append(kvlds)
            work.append(lambda: narrow(2))
            def atom():
                assert "z" not in vm.q
                check("L_z", ZLOAD, notready("v47", 1))
                a("s_waitcnt lgkmcnt(0)")
                for r in range(12): a(f"v_add_f32 v{80+2*r}, v{80+2*r}, v{81+2*r}")
                for r in range(12): a(f"buffer_atomic_add_f32 v{80+2*r}, v36, s[28:31], s16 offen offset:{r*256} sc1"); vm.op("kvp")
            post = [atom, lambda: narrow(4), lambda: narrow(6)]
            F1, HL = o.get("kv_f1", 6), o.get("kv_hl", 9)
            def deferred():
                koff(70, 77, 0)
                a("v_lshrrev_b32 v5, 5, v2\nv_lshlrev_b32 v5, 9, v5\ns_lshl_b32 s82, s22, 9\nv_add3_u32 v5, v5, v4, s82")
                for i in (0, 2, 4, 6): hstore(i, 112 + 2*i, "h2", 5)
        else:
            CG = [112, 116]
            for i in range(8): work.append(lambda i=i: gelu([(i, 6, 8), (i, 7, 9)], CG, accn(i, 6)[1]))
            nph = o.get("q_nph", 4)
            for i in range(nph): work.append(lambda i=i: phi([(i, 0), (i, 1)], CG, PQ + 4 * i))
            post = [lambda i=i: phi([(i, 0), (i, 1)], CG, PQ + 4 * i) for i in range(nph, 8)]
            F1, HL = o.get("q_f1", 5), o.get("q_hl", 8)
            def deferred():
                koff(70, 77, "s22")
                for i in range(8): hstore(i, accn(i, 6)[1], "h2")
        for n, w in enumerate(work):
            if n == F1:
                a(f"s_waitcnt vmcnt({vm.need('h1')})"); stamp("h1ack", **D); setflag(1, "s79"); vm.op("flag")
            if n == HL: a(HLOAD); vm.op("hf")
            w()
        stamp("ep2", **D)
        a(f"s_waitcnt vmcnt({vm.need('hf')})")
        check(f"L_a{typ}", HLOAD, notready("v31", 1))
        stamp("flagA", **D)
        issue2A(0); vm.op(0, 4); issue2A(1); vm.op(1, 4)
        for w in post: w()
        stamp("epend", **D)
        a(f"s_waitcnt vmcnt({vm.need(0)})\ns_barrier")
        stamp("A0", **D)
        for r in reads2("F", 0): a(r)
        issue2A(2); vm.op(2, 4); issue2A(3); vm.op(3, 4)
        deferred()
        a(f"s_waitcnt vmcnt({vm.need(1)}) lgkmcnt(0)\ns_barrier")
        vms[typ] = vm
        if typ == "KV": a("s_branch L_g2")

    a("L_g2:")
    vm = VM2(vms["KV"], vms["Q"])
    KVLOAD = "buffer_load_dword v47, v46, s[28:31], 0 offen sc1"
    PLOAD = "buffer_load_dword v31, v35, s[28:31], s13 offen sc1"
    def only(typ, name, body):
        a(f"s_cmp_eq_u32 s26, {int(typ == 'Q')}\ns_cbranch_scc1 {name}\n{name}_ret:")
        def blk():
            a(f"{name}:"); body(); a(f"s_branch {name}_ret")
        ool.append(blk)
    def silu_part(i):
        F = 160 + 16*i; P = PART + 16*i; T = 224; X = 192 + 16*i
        for t in range(2):
            r = XR + 8*i + 4*t
            a(f"v_permlane16_swap_b32 v{r}, v{r+2}\nv_permlane16_swap_b32 v{r+1}, v{r+3}")
        for e in range(16): a(f"v_accvgpr_read_b32 v{F+e}, a{128+16*i+e}")
        for h in range(0, 16, 2): a(f"v_pk_add_f32 {pr(F+h)}, {pr(F+h)}, {pr(P+h)}")
        for h in range(0, 16, 2): a(f"v_pk_mul_f32 {pr(T+h)}, {pr(F+h)}, s[18:19]")
        for e in range(16): a(f"v_exp_f32 v{T+e}, v{T+e}")
        for k in range(4): a(f"v_lshlrev_b32 v{X+2*k}, 16, v{XR+8*i+k}\nv_and_b32 v{X+2*k+1}, 0xffff0000, v{XR+8*i+k}")
        for h in range(0, 16, 2): a(f"v_pk_add_f32 {pr(T+h)}, {pr(T+h)}, 1.0 op_sel_hi:[1,0]")
        for e in range(16): a(f"v_rcp_f32 v{T+e}, v{T+e}")
        for k in range(4, 8): a(f"v_lshlrev_b32 v{X+2*k}, 16, v{XR+8*i+k}\nv_and_b32 v{X+2*k+1}, 0xffff0000, v{XR+8*i+k}")
        for h in range(0, 16, 2): a(f"v_pk_mul_f32 {pr(F+h)}, {pr(F+h)}, {pr(T+h)}")
    def kvflag():
        a(f"s_lshl_b32 s82, s27, 9\ns_lshl_b32 s83, s24, 6\ns_add_u32 s82, s82, s83\ns_lshl_b32 s83, s21, 5\ns_add_u32 s82, s82, s83\ns_add_u32 s82, s82, {KVF}")
        setflag(1, "s82")
    def kvfetch():
        a(notready("v47", 1) + "\ns_nop 0\ns_cbranch_vccz L_spinK_ok")
        spin("L_spinK", KVLOAD, notready("v47", 1))
        a(f"s_mul_i32 s82, s27, 6144\ns_add_u32 s82, s82, {KVA_OFF}\ns_add_u32 s83, s82, 4096")
        for k in range(6):
            a(f"buffer_load_dwordx4 {q4('v', PART+4*k)}, v4, s[28:31], s{82 if k < 4 else 83} offen offset:{(k&3)*1024} sc1")
    def ocomp():
        P = PART
        a(f"s_lshl_b32 s82, s27, 13\ns_add_u32 s82, s82, s78\ns_sub_u32 s82, s82, {32*8192}\ns_add_u32 s83, s82, 4096")
        for eb in range(2):
            for db in range(2):
                r = P + 8*db + 4*eb
                a(f"v_cvt_pk_bf16_f32 v{8+4*eb+2*db}, v{r}, v{r+1}\nv_cvt_pk_bf16_f32 v{8+4*eb+2*db+1}, v{r+2}, v{r+3}")
        for db in range(2):
            r = P + 16 + 4*db
            a(f"v_cvt_pk_bf16_f32 v{36+2*db}, v{r}, v{r+1}\nv_cvt_pk_bf16_f32 v{36+2*db+1}, v{r+2}, v{r+3}")
        a("s_nop 1")
        Dd = lambda i: P + 12 * i
        for i in range(8):
            d = Dd(i); q = q4("v", PQ + 4 * i)
            a(f"v_mfma_f32_16x16x32_bf16 {q4('v', d+8)}, v[36:39], {q}, 0")
            a(f"v_mfma_f32_16x16x32_bf16 {q4('v', d)}, v[8:11], {q}, 0")
            a(f"v_mfma_f32_16x16x32_bf16 {q4('v', d+4)}, v[12:15], {q}, 0")
        a("s_nop 1")
        for i in range(8): a(f"v_add_f32 v{Dd(i)+8}, v34, v{Dd(i)+8}")
        for i in range(8): a(f"v_rcp_f32 v{Dd(i)+8}, v{Dd(i)+8}")
        for i in range(8):
            d = Dd(i)
            for h in range(0, 8, 2): a(f"v_pk_mul_f32 {pr(d+h)}, {pr(d+h)}, {pr(d+8)} op_sel_hi:[1,0]")
            for h in range(4): a(f"v_cvt_pk_bf16_f32 v{d+8+h}, v{d+2*h}, v{d+2*h+1}")
            a(f"buffer_store_dwordx4 {q4('v', d+8)}, v4, s[28:31], s{82 if i < 4 else 83} offen offset:{(i&3)*1024} sc1")
    TKL, TX = o.get("tkl", 4), o.get("tx", 14)
    TF, TC, TG_ = 28 + o.get("tf", 5), 28 + o.get("tc", 7), 28 + o.get("tg", 10)
    for t in range(44):
        if t % (4 if t < 28 else 2) == 0: stamp(f"F{t}" if t < 28 else f"S{t-28}", False)
        ex = []; need = [t + 2]
        early = lambda txt, tag: (ex.append((2, "V", txt)), vm.op(tag))
        if t == 0: ex += [(26, "s", f"s_lshl_b32 s82, s27, 9"), (27, "s", f"s_add_u32 s82, s82, {KVF}"), (27, "v", "v_and_b32 v46, 15, v2"), (28, "v", "v_lshl_add_u32 v46, v46, 5, s82"),
                          (30, "s", "s_mov_b32 s16, 32768")]
        if t == TKL: early(KVLOAD, "kvf")
        if t == 9: early(HLOAD, "hf")
        if t == 21: early(SLOAD, "hf")
        if TX <= t < TX + 4:
            i, u = (t - TX) >> 1, (t - TX) & 1
            early(f"buffer_load_dwordx4 {q4('v', XR+8*i+4*u)}, v30, s[56:59], {'s16' if i else 0} offen offset:{u*64}", "x")
        if t == 24: ex += [(26, "s", "s_xor_b32 s12, s14, 4"), (27, "s", "s_lshl_b32 s13, s12, 5"), (28, "s", f"s_add_u32 s13, s13, {FPF}"), (29, "s", f"s_mov_b32 s18, {f2u(-LOG2E):#x}"), (30, "s", "s_mov_b32 s19, s18")]
        if t == TF: a(PLOAD); vm.op("pf")
        if PH(t + 4): vm.op(t + 4, 8 if PH(t + 4) == "F" else 6)
        if t == TC: need.append("pf")
        if t == TG_: need.append("pp")
        if t == 27:
            step2(t, [], ex)
            a(f"s_lshl_b32 s82, s14, 13\ns_add_u32 s82, s82, {FP_OFF}\ns_add_u32 s83, s82, 4096")
            for i in (2, 3):
                for cb in range(4):
                    a(f"buffer_store_dwordx4 {accF(i,cb)}, v4, s[28:31], s{82 if i == 2 else 83} offen offset:{cb*1024} sc1"); vm.op("fp")
            a(f"s_waitcnt vmcnt({vm.need(*need)}) lgkmcnt(0)\ns_barrier")
        elif t + 2 < 44: step2(t, [f"s_waitcnt vmcnt({vm.need(*need)}) lgkmcnt(0)", "s_barrier"], ex)
        else: step2(t, ["s_waitcnt lgkmcnt(0)"] if t < 43 else [], ex)
        if t == 0:
            assert vm.done("kvp"); only("KV", "L_kvflag", kvflag); vm.op("flag", typ="KV")
        if t == 2:
            assert vm.done("h2"); setflag(2, "s79"); vm.op("flag")
        if t == TKL + 2:
            assert vm.done("kvf"); only("Q", "L_kvfetch", kvfetch); vm.op("kvl", 6, typ="Q")
        if t == TKL + 5:
            assert vm.done("kvl"); only("Q", "L_ocomp", ocomp); vm.op("o", 8, typ="Q")
        if t == TKL + 8:
            assert vm.done("o"); only("Q", "L_oflag", lambda: setflag(3, "s79")); vm.op("flag", typ="Q")
        if t == 11:
            assert vm.done("hf"); check("L_b", HLOAD, notready("v31", 2))
        if t == 23:
            assert vm.done("hf"); check("L_s", SLOAD, notready("v31", 3))
        if t == 30:
            assert vm.done("fp"); a(f"s_lshl_b32 s82, s14, 5\ns_add_u32 s82, s82, {FPF}"); setflag(1, "s82"); vm.op("flag")
        if t == TC:
            assert vm.done("pf"); check("L_p", PLOAD, notready("v31", 1))
            a(f"s_lshl_b32 s82, s12, 13\ns_add_u32 s82, s82, {FP_OFF}\ns_add_u32 s83, s82, 4096")
            for i in range(2):
                for cb in range(4):
                    a(f"buffer_load_dwordx4 {q4('v', PART+16*i+4*cb)}, v4, s[28:31], s{82 if i == 0 else 83} offen offset:{cb*1024} sc1"); vm.op("pp")
        if t == TG_:
            assert vm.done("pp") and vm.done("x"); silu_part(0)
        if t == TG_ + 1: silu_part(1)
    stamp("Send")
    a("s_nop 4")
    for i in range(2):
        F = 160 + 16*i; S = 48 + 16*i; X = 192 + 16*i
        for h in range(0, 16, 2): a(f"v_pk_fma_f32 {pr(F+h)}, {pr(F+h)}, {pr(S+h)}, {pr(X+h)}")
        for k in range(8): a(f"v_cvt_pk_bf16_f32 v{224+8*i+k}, v{F+2*k}, v{F+2*k+1}")
        a("s_nop 0")
        for t in range(2):
            r = 224 + 8*i + 4*t
            a(f"v_permlane16_swap_b32 v{r}, v{r+2}\nv_permlane16_swap_b32 v{r+1}, v{r+3}")
            a(f"buffer_store_dwordx4 {q4('v', r)}, v30, s[60:63], {'s16' if i else 0} offen offset:{t*64} {o.get('outfl', '')}")
    if TS:
        stamp("fin"); a("s_waitcnt vmcnt(0)"); stamp("done"); stamp("x", dup=True)
        a(f"s_add_u32 s28, s28, {TS_OFF + 65536}\ns_addc_u32 s29, s29, 0")
        a(f"s_lshl_b32 s3, s2, 2\ns_add_u32 s3, s3, s20\ns_lshl_b32 s3, s3, 9\nv_lshlrev_b32 v1, 2, v2")
        a("buffer_store_dword v0, v1, s[28:31], s3 offen\nbuffer_store_dword v23, v1, s[28:31], s3 offen offset:256")
    a("L_end:\ns_endpgm")
    for blk in ool: blk()
    a("L_pcref:\ns_endpgm")
    return a.text()

def gen(**o):
    return header([(KNAME, 256, 256, 163840)]) + kernel_begin(KNAME) + gen_mega(o) + RODATA + descriptor(KNAME, 512, 256)

if __name__ == "__main__":
    import sys
    ref = open("recurrent_scan__linear_attn_block__geglu_ffn__prompt.s.ref").read().split("\n")
    open(sys.argv[1], "w").write("\n".join(ref[:11]) + "\n" + gen())
```
